```python
import torch

def _softmax(x, axis=-1):
    return torch.softmax(x, dim=axis)
def _gelu(x):
    return torch.nn.functional.gelu(x, approximate="tanh")
def _silu(x):
    return torch.nn.functional.silu(x)
def _sigmoid(x):
    return torch.sigmoid(x)
def _layernorm(x, axis=-1, eps=1e-5):
    m = x.mean(dim=axis, keepdim=True)
    v = x.var(dim=axis, keepdim=True, unbiased=False)
    return (x - m) / torch.sqrt(v + eps)
def _scatter_add(tgt, idx, src, axis=0):
    return tgt.clone().index_add_(axis, idx, src)
def _segment_sum(src, seg, n):
    out = torch.zeros((n,) + src.shape[1:], dtype=src.dtype)
    return out.index_add_(0, seg, src)
def _pad(x, pw):
    flat = tuple(v for pair in reversed(pw) for v in pair)
    return torch.nn.functional.pad(x, flat)

kernel_name = 'parallel_sum__sliding_block__glu_gated_geglu__prompt'

def setup_inputs():

    _w = (lambda a: (lambda t: t.to(torch.bfloat16) if t.is_floating_point() else t)(torch.as_tensor(a)))
    def _A_setup():
        B, S, D = 1, 2048, 512
        return {
            "x": _w((lambda *s: torch.randn(*s, dtype=torch.bfloat16) * 0.05)(B, S, D)),
            "wqkv": _w((lambda *s: torch.randn(*s, dtype=torch.bfloat16) * 0.05)(D, 3 * D)),
            "wo": _w((lambda *s: torch.randn(*s, dtype=torch.bfloat16) * 0.05)(D, D)),
        }
    _A_in = _A_setup()

    def _B_setup():
        B, S, Dm, Df = 1, 2048, 512, 1376
        return {
            "x": _w((lambda *s: torch.randn(*s, dtype=torch.bfloat16) * 0.05)(B, S, Dm)),
            "w_gate": _w((lambda *s: torch.randn(*s, dtype=torch.bfloat16) * 0.8)(Dm, Df) * (Dm ** -0.5)),
            "w_up": _w((lambda *s: torch.randn(*s, dtype=torch.bfloat16) * 0.8)(Dm, Df) * (Dm ** -0.5)),
            "w_down": _w((lambda *s: torch.randn(*s, dtype=torch.bfloat16) * 0.8)(Df, Dm) * (Df ** -0.5)),
        }
    _B_in = _B_setup()

    return {
        "A_x": _A_in["x"],
        "A_wqkv": _A_in["wqkv"],
        "A_wo": _A_in["wo"],
        "B_x": _B_in["x"],
        "B_w_gate": _B_in["w_gate"],
        "B_w_up": _B_in["w_up"],
        "B_w_down": _B_in["w_down"],
    }

def reference(A_x, A_wqkv, A_wo, B_x, B_w_gate, B_w_up, B_w_down):
    def _A_ref(x, wqkv, wo):
        B, S, D = x.shape
        H = 32; Dh = D // H; W = 256
        qkv = (lambda x, *d: x.permute(*d))((x @ wqkv).reshape(B, S, 3, H, Dh), 2, 0, 3, 1, 4)
        q, k, v = qkv[0], qkv[1], qkv[2]
        scores = torch.einsum("bhqd,bhkd->bhqk", q, k) * (Dh ** -0.5)
        idx = torch.arange(S)
        mask = (idx[:, None] - idx[None, :] >= 0) & (idx[:, None] - idx[None, :] < W)
        scores = torch.where(mask[None, None], scores, -1e9)
        p = _softmax(scores, axis=-1)
        o = torch.einsum("bhqk,bhkd->bhqd", p, v)
        return (lambda x, *d: x.permute(*d))(o, 0, 2, 1, 3).reshape(B, S, D) @ wo

    def _B_ref(x, w_gate, w_up, w_down):
        g = torch.einsum("bsd,df->bsf", x, w_gate)
        u = torch.einsum("bsd,df->bsf", x, w_up)
        h = _gelu(g) * u
        return torch.einsum("bsf,fd->bsd", h, w_down)

    x = A_x
    xn = _layernorm(x, axis=-1)
    return x + _A_ref(xn, A_wqkv, A_wo) + _B_ref(xn, B_w_gate, B_w_up, B_w_down)
```

```python
import re

REG_RE = re.compile(r"^(-|abs\()?([vas])(?:(\d+)|\[(\d+):(\d+)\])\)?$")


def regs_of(tok):
    tok = tok.strip()
    if tok == "vcc":
        return {("s", "vcc_lo"), ("s", "vcc_hi")}
    if tok in ("vcc_lo", "vcc_hi", "m0"):
        return {("s", tok)}
    if tok == "exec":
        return {("s", "exec_lo"), ("s", "exec_hi")}
    if tok in ("exec_lo", "exec_hi"):
        return {("s", tok)}
    m = REG_RE.match(tok)
    if not m:
        return set()
    k = m.group(2)
    if m.group(3) is not None:
        return {(k, int(m.group(3)))}
    return {(k, i) for i in range(int(m.group(4)), int(m.group(5)) + 1)}


TRANS = ("v_exp_f32", "v_log_f32", "v_rcp_f32", "v_rsq_f32", "v_sqrt_f32", "v_sin_f32", "v_cos_f32")
NODST_S = ("s_cmp", "s_cbranch", "s_branch", "s_waitcnt", "s_barrier", "s_nop", "s_setprio", "s_sleep", "s_endpgm",
           "s_bitcmp")


class Ins:
    __slots__ = ("text", "op", "reads", "writes", "cls", "mfma_c", "mfma_ab", "is_label", "target", "nstates", "lds_dma",
                 "store_data", "comment")

    def __init__(self, text):
        self.text = text
        t = text.split(";")[0].strip()
        if text.startswith("; need "):
            self.is_label = False
            self.target = None
            self.op = "need"
            self.cls = "need"
            self.reads = set().union(*[regs_of(x) if not x.strip().startswith("@") else {("p", x.strip()[1:])} for x in text[7:].split(",")])
            self.writes = set()
            self.mfma_c, self.mfma_ab, self.store_data = set(), set(), set()
            self.lds_dma = False
            self.nstates = 0
            return
        self.is_label = t.endswith(":")
        self.target = None
        self.reads, self.writes = set(), set()
        self.mfma_c, self.mfma_ab = set(), set()
        self.store_data = set()
        self.lds_dma = False
        self.nstates = 1
        if self.is_label or t == "" or t.startswith("."):
            self.op = t
            self.cls = "label" if self.is_label else "dir"
            self.nstates = 0
            return
        parts = t.split(None, 1)
        op = parts[0]
        self.op = op
        rest = parts[1] if len(parts) > 1 else ""
        ops = [x.strip() for x in rest.split(",")] if rest else []
        mods = ""
        if ops:
            last = ops[-1].split(None, 1)
            ops[-1] = last[0]
            mods = last[1] if len(last) > 1 else ""
        clean = []
        for o in ops:
            clean.append(o)
        ops = []
        depth = 0
        cur = ""
        for ch in rest:
            if ch == "[" or ch == "(":
                depth += 1
            if ch == "]" or ch == ")":
                depth -= 1
            if ch == "," and depth == 0:
                ops.append(cur.strip())
                cur = ""
            else:
                cur += ch
        if cur.strip():
            ops.append(cur.strip())
        mods = ""
        if ops:
            last = ops[-1].split(None, 1)
            ops[-1] = last[0]
            mods = last[1] if len(last) > 1 else ""
        R = lambda i: regs_of(ops[i]) if i < len(ops) else set()
        allr = lambda a: set().union(*[regs_of(o) for o in ops[a:]]) if ops[a:] else set()
        if op.startswith("v_mfma"):
            self.cls = "mfma"
            self.writes = R(0)
            self.mfma_ab = R(1) | R(2)
            self.mfma_c = R(3)
            self.reads = self.mfma_ab | self.mfma_c
        elif op.startswith("v_"):
            self.cls = "valu"
            base = op.replace("_e32", "").replace("_e64", "")
            if base in TRANS:
                self.cls = "trans"
            if base.startswith("v_dot2"):
                self.cls = "dot"
            self.writes = R(0)
            self.reads = allr(1)
            if base.startswith(("v_fmac", "v_dot2c", "v_pk_fmac")):
                self.reads |= R(0)
            if base.startswith("v_permlane"):
                self.writes = R(0) | R(1)
                self.reads = R(0) | R(1)
            if base.startswith(("v_add_co", "v_sub_co", "v_addc_co", "v_subb_co")):
                self.writes = R(0) | R(1)
                self.reads = allr(2)
            if base.startswith("v_cmpx"):
                self.writes |= regs_of("exec")
        elif op.startswith("ds_"):
            self.cls = "ds"
            if op.startswith(("ds_read", "ds_bpermute", "ds_permute", "ds_swizzle")):
                self.writes = R(0)
                self.reads = allr(1)
            else:
                self.reads = allr(0)
                self.store_data = allr(1)
        elif op.startswith(("buffer_", "global_")):
            self.cls = "vmem"
            if op in ("buffer_inv", "buffer_wbl2"):
                pass
            elif " lds" in (" " + mods + " ").replace(" lds ", " lds") or mods.endswith("lds"):
                self.lds_dma = True
                self.reads = allr(0) | {("s", "m0")}
            elif "load" in op:
                self.writes = R(0)
                self.reads = allr(1)
            elif "store" in op:
                self.reads = allr(0)
                self.store_data = R(0) if op.startswith("buffer_") else R(1)
            elif "atomic" in op:
                self.reads = allr(0)
                if "sc0" in mods.split():
                    self.writes = R(0)
        elif op.startswith(("s_load", "s_memtime", "s_memrealtime", "s_buffer_load")):
            self.cls = "smem"
            self.writes = R(0)
            self.reads = allr(1)
        elif op.startswith("s_"):
            self.cls = "salu"
            if op.startswith(NODST_S):
                self.reads = allr(0) if op.startswith(("s_cmp", "s_bitcmp")) else set()
                if op.startswith(("s_cbranch", "s_branch")):
                    self.target = ops[0]
                    if "vcc" in op:
                        self.reads = regs_of("vcc")
                    if "exec" in op:
                        self.reads = regs_of("exec")
                if op == "s_nop":
                    self.nstates = int(ops[0], 0) + 1
            else:
                self.writes = R(0)
                self.reads = allr(1)
                if "saveexec" in op:
                    self.writes |= regs_of("exec")
                    self.reads |= regs_of("exec")
                if op.startswith(("s_addk", "s_mulk", "s_cmov")):
                    self.reads |= R(0)
        else:
            raise ValueError("unknown instruction: " + text)
        for kind, name in re.findall(r"@([wr]) (\w+)", text):
            (self.writes if kind == "w" else self.reads).add(("p", name))


class WaitState:
    def __init__(self):
        self.vm = []
        self.lg = []
        self.smem = False

    def copy(self):
        w = WaitState()
        w.vm = list(self.vm)
        w.lg = list(self.lg)
        w.smem = self.smem
        return w


WAIT_RE = re.compile(r"(vmcnt|lgkmcnt)\((\d+)\)")


def needed_waits(ins, st):
    wr = {r for r in ins.writes if r[0] != "p"}
    touch_vm = ins.reads | (set() if ins.cls == "vmem" else wr)
    touch_lg = ins.reads | (set() if ins.cls == "ds" and not st.smem else wr)
    vm = lg = None
    for i, regs in enumerate(st.vm):
        if regs & touch_vm:
            vm = len(st.vm) - 1 - i
    for i, regs in enumerate(st.lg):
        if regs & touch_lg:
            lg = len(st.lg) - 1 - i
    if lg is not None and st.smem:
        lg = 0
    if vm is not None:
        vm = min(vm, 63)
    if lg is not None:
        lg = min(lg, 15)
    return vm, lg


def apply_wait(st, vm, lg):
    if vm is not None and len(st.vm) > vm:
        st.vm = st.vm[len(st.vm) - vm:] if vm else []
    if lg is not None and len(st.lg) > lg:
        st.lg = st.lg[len(st.lg) - lg:] if lg else []
        if lg == 0:
            st.smem = False
    if lg == 0:
        st.smem = False


def step_state(ins, st):
    if ins.op == "s_waitcnt":
        d = dict((k, int(v)) for k, v in WAIT_RE.findall(ins.text.split(";")[0]))
        apply_wait(st, d.get("vmcnt"), d.get("lgkmcnt"))
    elif ins.cls == "vmem":
        st.vm.append(set(ins.writes))
    elif ins.cls == "ds":
        st.lg.append(set(ins.writes))
    elif ins.cls == "smem":
        st.lg.append(set(ins.writes))
        st.smem = True


def wait_text(vm, lg):
    p = []
    if vm is not None:
        p.append(f"vmcnt({vm})")
    if lg is not None:
        p.append(f"lgkmcnt({lg})")
    return "s_waitcnt " + " ".join(p)


class Asm:
    def __init__(self):
        self.out = []
        self.st = WaitState()
        self.auto = True

    def raw(self, text):
        for line in text.split("\n"):
            if line.strip():
                self.out.append(Ins(line.strip()))

    def __call__(self, text):
        for line in text.split("\n"):
            line = line.strip()
            if not line:
                continue
            ins = Ins(line)
            if self.auto and ins.cls not in ("label", "dir"):
                vm, lg = needed_waits(ins, self.st)
                if vm is not None or lg is not None:
                    w = Ins(wait_text(vm, lg))
                    self.out.append(w)
                    step_state(w, self.st)
            self.out.append(ins)
            step_state(ins, self.st)

    def many(self, lines):
        for l in lines:
            self(l)

    def loop(self, label, body, tail):
        seq = []
        for l in list(body) + list(tail):
            for x in l.split("\n"):
                if x.strip():
                    seq.append(Ins(x.strip()))
        waits = [(None, None)] * len(seq)

        def mn(a, b):
            if a is None:
                return b
            if b is None:
                return a
            return min(a, b)

        for _ in range(6):
            changed = False
            st = self.st.copy()
            for it in range(3):
                for i, ins in enumerate(seq):
                    if ins.cls in ("label", "dir"):
                        continue
                    apply_wait(st, *waits[i])
                    vm, lg = needed_waits(ins, st)
                    if vm is not None or lg is not None:
                        new = (mn(waits[i][0], vm), mn(waits[i][1], lg))
                        if new != waits[i]:
                            waits[i] = new
                            changed = True
                        apply_wait(st, vm, lg)
                    step_state(ins, st)
            if not changed:
                break
        else:
            raise RuntimeError("wait fixpoint did not converge")
        self.out.append(Ins(label + ":"))
        for i, ins in enumerate(seq):
            if waits[i] != (None, None):
                self.out.append(Ins(wait_text(*waits[i])))
            self.out.append(ins)
        self.st = st

    def text(self):
        L = []
        for i in self.out:
            if i.cls == "need":
                continue
            L.append(i.text if i.cls in ("label", "dir") else "    " + i.text)
        return "\n".join(L) + "\n"


def _vg(s):
    return {r for r in s if r[0] in ("v", "a")}


def _sg(s):
    return {r for r in s if r[0] == "s"}


def required_gap(p, c):
    need = 0
    pv = p.cls in ("valu", "trans", "dot")
    cv = c.cls in ("valu", "trans", "dot")
    if p.cls == "mfma":
        big = "32x32" in p.op
        n_rw, n_ov, n_war = (12, 10, 7) if big else (8, 6, 3)
        D = p.writes
        if c.cls == "mfma":
            if D & c.mfma_ab:
                need = max(need, n_rw)
            if D & c.mfma_c and not (D == c.mfma_c and p.op == c.op):
                need = max(need, n_ov)
            if D & c.writes and not (D & c.mfma_c):
                need = max(need, n_ov)
        elif cv:
            if D & (c.reads | c.writes):
                need = max(need, n_rw)
            if p.mfma_c & c.writes:
                need = max(need, n_war)
        elif c.cls in ("ds", "vmem"):
            if D & (c.reads | c.writes):
                need = max(need, n_rw)
    if pv:
        W = _vg(p.writes)
        if c.cls == "mfma" and W & c.reads:
            need = max(need, 2)
        if c.op.startswith("v_permlane") and W & c.reads:
            need = max(need, 2)
        if c.op.startswith(("v_readfirstlane", "v_readlane")) and W & c.reads:
            need = max(need, 1)
        if "dpp" in c.text and W & c.reads:
            need = max(need, 2)
        if p.cls == "trans" and cv and c.cls != "trans" and W & c.reads:
            need = max(need, 1)
        if p.cls == "trans" and c.cls == "trans" and W & c.reads:
            need = max(need, 1)
        if p.cls == "dot":
            if W & (c.reads | c.writes):
                same = p.op == c.op
                if not same:
                    need = max(need, 3)
                else:
                    ab = c.reads - c.writes if c.op.startswith("v_dot2c") else c.reads
                    if c.op.startswith("v_dot2c"):
                        if W & ab:
                            need = max(need, 3)
        S = _sg(p.writes)
        if S:
            if c.cls == "vmem" and S & c.reads:
                need = max(need, 5)
            if cv and S & c.reads:
                need = max(need, 4 if c.op.startswith(("v_readlane", "v_writelane")) else 2)
            if c.cls in ("salu", "smem") and S & c.reads:
                need = max(need, 4)
            ex = regs_of("exec")
            if S & ex:
                if c.cls == "mfma" or c.op.startswith(("v_permlane", "v_readfirstlane", "v_readlane")):
                    need = max(need, 4)
    if p.cls == "salu" and ("s", "m0") in p.writes and c.lds_dma:
        need = max(need, 1)
    if p.cls == "vmem" and p.store_data and ("x4" in p.op or "x3" in p.op):
        if _vg(c.writes) & p.store_data:
            need = max(need, 2)
    return need


def check_hazards(out, fix=True, window=14):
    total = 0
    for _ in range(50):
        labels = {i.op[:-1]: k for k, i in enumerate(out) if i.is_label}
        preds = {}
        for k, i in enumerate(out):
            if i.target is not None and i.target in labels:
                preds.setdefault(labels[i.target], []).append(k)
        fixes = []
        for k, c in enumerate(out):
            if c.cls in ("label", "dir", "need"):
                continue
            worst = 0
            why = None
            stack = [(k, 0)]
            seen = set()
            while stack:
                pos, dist = stack.pop()
                cand = []
                if pos > 0 and out[pos - 1].op not in ("s_branch", "s_endpgm"):
                    cand.append(pos - 1)
                if pos in preds:
                    cand += preds[pos]
                for q in cand:
                    if (q, dist) in seen:
                        continue
                    seen.add((q, dist))
                    p = out[q]
                    if p.cls not in ("label", "dir", "need"):
                        need = required_gap(p, c)
                        if need - dist > worst:
                            worst = need - dist
                            why = p.text
                    nd = dist + p.nstates
                    if nd < window:
                        stack.append((q, nd))
            if worst > 0:
                fixes.append((k, worst, why))
        if not fixes:
            return total
        if not fix:
            for k, w, why in fixes:
                print("HAZARD", w, "before:", out[k].text, " <- ", why)
            return len(fixes)
        last = -100
        ins_list = []
        for k, w, why in fixes:
            if k - last > window:
                ins_list.append((k, w, why))
                last = k
        for k, w, why in reversed(ins_list):
            out.insert(k, Ins(f"s_nop {w - 1}"))
            total += 1
    raise RuntimeError("hazard fixing did not converge")


def interleave(main, fill, per=None, start=0):
    res = []
    n = len(main) - start
    done = 0
    for i, m in enumerate(main):
        res.append(m)
        if i >= start:
            upto = (len(fill) * (i - start + 1) + n - 1) // n if per is None else min(len(fill), per * (i - start + 1))
            res += fill[done:upto]
            done = upto
    res += fill[done:]
    return res
```

```python
import sys, math, struct
from asmlib import Asm, Ins, check_hazards, interleave, WaitState

NAME = "parallel_sum__sliding_block__glu_gated_geglu__prompt"


def f2u(x):
    return struct.unpack("<I", struct.pack("<f", x))[0]


WS_Q = 0
WS_K = 2 << 20
WS_V = 4 << 20
WS_F = 6 << 20
WS_FLAG = 14 << 20
WS_SIZE = 16 << 20
NKG = 118
STG = 18496
P_UP = 6176
P_QKV = 12352
W0 = 163840 - 3 * STG
LDS_SCR = 98304
SX, SW, SWS, SWD, SWO, SOUT, SDBG = 24, 28, 32, 36, 40, 44, 48
S_W, S_R, S_G, S_ROT, S_TB, S_NG = 52, 53, 54, 55, 56, 57
T0 = 58
S_MASK = 70


def srd(n):
    return f"s[{n}:{n + 3}]"


def vr(b, n):
    return f"v[{b}:{b + n - 1}]" if n > 1 else f"v{b}"


def ar(b, n):
    return f"a[{b}:{b + n - 1}]" if n > 1 else f"a{b}"


class Gen:
    def __init__(self, mode, opts):
        self.mode = mode
        self.o = opts
        self.a = Asm()
        self.uid = 0

    def lab(self, s):
        self.uid += 1
        return f"L{s}_{self.uid}"

    def common(self, end):
        a = self.a
        a(f"s_cmp_ge_u32 s2, 256\ns_cbranch_scc1 {end}")
        a("s_load_dwordx16 s[4:19], s[0:1], 0\ns_load_dwordx4 s[20:23], s[0:1], 64")
        a("v_and_b32 v1, 63, v0\nv_lshrrev_b32 v2, 6, v0\ns_nop 0")
        a(f"v_readfirstlane_b32 s{S_W}, v2")
        a(f"s_and_b32 s{T0}, s2, 7\ns_lshr_b32 s{T0+1}, s2, 3")
        a(f"s_and_b32 s{S_R}, s{T0}, 1\ns_lshl_b32 s{S_R}, s{S_R}, 3\ns_and_b32 s{T0+2}, s{T0+1}, 7\ns_add_u32 s{S_R}, s{S_R}, s{T0+2}")
        a(f"s_lshr_b32 s{S_G}, s{T0}, 1\ns_lshl_b32 s{S_G}, s{S_G}, 2\ns_lshr_b32 s{T0+2}, s{T0+1}, 3\ns_add_u32 s{S_G}, s{S_G}, s{T0+2}")
        a(f"s_lshl_b32 s{S_TB}, s{T0}, 2\ns_and_b32 s{T0+2}, s{T0+1}, 3\ns_add_u32 s{S_TB}, s{S_TB}, s{T0+2}")
        a(f"s_lshr_b32 s{S_NG}, s{T0+1}, 2")
        a(f"s_and_b32 s{T0+2}, s{S_G}, 3\ns_lshl_b32 s{T0+2}, s{T0+2}, 1\ns_add_u32 s{S_ROT}, s{S_R}, s{T0+2}\ns_and_b32 s{S_ROT}, s{S_ROT}, 7")
        if not self.o.get("rot", 1):
            a(f"s_mov_b32 s{S_ROT}, 0")

    def mk_srd(self, d, p, size):
        self.a(f"s_mov_b32 s{d}, s{p}\ns_mov_b32 s{d+1}, s{p+1}\ns_mov_b32 s{d+2}, {size}\ns_mov_b32 s{d+3}, 0x20000")

    V_XO, V_XR, V_WO = 2, 6, 10
    V_GU0, V_Q0, V_GU, V_Q = 13, 14, 15, 224
    V_M, V_RS = 225, 226
    V_ST = 227
    V_T = 232
    V_CT = 248
    ACC, XR, CB, WF = 16, 160, 192, 200
    NWF, AHEAD = 6, 5
    S_XSO, S_WSO, S_RD, S_LD, S_PART, S_STR16, S_WLIM, S_IT, S_HIM = T0, T0+1, T0+2, T0+3, T0+4, T0+5, T0+6, T0+7, T0+8

    def x_dma(self, lb):
        a = self.a
        t = T0 + 9
        a(f"s_add_u32 s{t}, s{S_ROT}, {lb}\ns_and_b32 s{t}, s{t}, 7\ns_lshl_b32 s{t}, s{t}, 7\ns_add_u32 s{t}, s{t}, s{self.S_XSO}")
        a(f"s_lshl_b32 s{t+1}, s{S_W}, 12\ns_add_u32 m0, s{t+1}, {((lb + 6) & 7) * 16384}\ns_nop 0")
        for o in range(4):
            a(f"buffer_load_dwordx4 v{self.V_XO+o}, {srd(SX)}, s{t} offen offset:{o*1024} lds ; @w x{lb}")

    def w_dma_half(self, half):
        L = [f"s_add_u32 m0, s{self.S_LD}, s{self.S_PART}" if half == 0 else "s_add_u32 m0, m0, 3072"]
        L.append("s_nop 0") if False else None
        L2 = [f"buffer_load_dwordx4 v{self.V_WO+i}, {srd(SW)}, s{self.S_WSO} offen offset:{i*1024} lds" for i in range(3)]
        return [x for x in L if x], L2

    def w_adv(self):
        return [f"s_add_u32 s{self.S_WSO}, s{self.S_WSO}, s{self.S_STR16}"]

    def w_wrap(self):
        return [f"s_cmp_ge_u32 s{self.S_WSO}, s{self.S_WLIM}", f"s_cselect_b32 s{self.S_WSO}, 0, s{self.S_WSO}"]

    def center(self, xs, cb):
        L = []
        x, c, t = self.XR + 4 * xs, self.CB + 4 * cb, self.V_CT
        for d in range(4):
            t0, t1 = t + 2 * (d & 1), t + 2 * (d & 1) + 1
            L += [f"v_lshlrev_b32 v{t0}, 16, v{x+d}", f"v_and_b32 v{t1}, s{self.S_HIM}, v{x+d}",
                  f"v_sub_f32 v{t0}, v{t0}, v{self.V_M}", f"v_sub_f32 v{t1}, v{t1}, v{self.V_M}",
                  f"v_cvt_pk_bf16_f32 v{c+d}, v{t0}, v{t1}"]
        return L

    def wread(self, k):
        step, u = divmod(k % 72, 9)
        h = step & 1
        f = self.WF + 4 * (k % self.NWF)
        L = []
        for aa in range(2):
            if u < 6:
                off, b = (16 * h + 4 * aa) * 192 + u * 32, self.V_GU
            else:
                off, b = (16 * h + 4 * aa) * 192 + (u - 6) * 64, self.V_Q
            L.append(f"ds_read_b64_tr_b16 {vr(f + 2*aa, 2)}, v{b} offset:{off}")
        return L

    def p1_start(self):
        a = self.a
        XO, XRb, WO = self.V_XO, self.V_XR, self.V_WO
        a("v_lshrrev_b32 v20, 3, v1\nv_lshrrev_b32 v21, 4, v1\nv_and_b32 v22, 7, v1")
        for o in range(4):
            a(f"v_add_u32 v23, {4*o}, v21\nv_and_b32 v23, 7, v23\nv_xor_b32 v23, v23, v22\nv_lshlrev_b32 v23, 4, v23")
            a(f"v_lshl_add_u32 v23, v20, 10, v23\nv_add_u32 v{XO+o}, {o*8192 - o*1024}, v23")
        a(f"s_lshl_b32 s{self.S_XSO}, s{S_R}, 17\ns_lshl_b32 s{T0+9}, s{S_W}, 15\ns_add_u32 s{self.S_XSO}, s{self.S_XSO}, s{T0+9}")
        a("s_waitcnt lgkmcnt(0)")
        self.mk_srd(SX, 4, 2048 * 1024)
        for lb in range(3):
            self.x_dma(lb)
        a(f"s_cmp_eq_u32 s{S_W}, 1\ns_cselect_b32 s{SW}, s14, s12\ns_cselect_b32 s{SW+1}, s15, s13\ns_cselect_b32 s{self.S_PART}, {P_UP}, 0")
        a(f"s_cmp_eq_u32 s{S_G}, 15\ns_cselect_b32 s{SW+2}, 0, {512*2752}")
        a(f"s_mov_b32 s{T0+9}, 2752")
        a(f"s_cmp_ge_u32 s{S_W}, 2\ns_cselect_b32 s{SW}, s6, s{SW}\ns_cselect_b32 s{SW+1}, s7, s{SW+1}\ns_cselect_b32 s{SW+2}, {512*3072}, s{SW+2}")
        a(f"s_cselect_b32 s{self.S_PART}, {P_QKV}, s{self.S_PART}\ns_cselect_b32 s{T0+9}, 3072, s{T0+9}")
        a(f"s_mov_b32 s{SW+3}, 0x20000")
        a(f"s_lshl_b32 s{self.S_STR16}, s{T0+9}, 4\ns_lshl_b32 s{self.S_WLIM}, s{T0+9}, 9")
        a(f"s_lshl_b32 s{T0+10}, s{self.S_STR16}, 2\ns_mul_i32 s{self.S_WSO}, s{S_ROT}, s{T0+10}")
        a(f"s_mul_i32 s{T0+10}, s{S_G}, 192")
        for i in range(3):
            a(f"v_add_u32 v20, {64*i}, v1\nv_mul_u32_u24 v21, 683, v20\nv_lshrrev_b32 v21, 13, v21")
            a(f"v_mul_u32_u24 v22, 12, v21\nv_sub_u32 v22, v20, v22\nv_lshlrev_b32 v22, 4, v22")
            a(f"v_mul_lo_u32 v21, v21, s{T0+9}\nv_add3_u32 v21, v21, v22, s{T0+10}")
            a(f"v_subrev_u32 v{WO+i}, {1024*i}, v21" if i else f"v_mov_b32 v{WO}, v21")
        a(f"s_cmp_eq_u32 s{S_W}, 3\ns_cselect_b64 vcc, -1, 0")
        a("v_and_b32 v20, 31, v1\nv_lshrrev_b32 v21, 5, v1\nv_bfe_u32 v22, v1, 1, 3")
        a(f"s_lshl_b32 s{T0+9}, s{S_W}, 12")
        for q in range(4):
            a(f"v_add_u32 v23, {2*q}, v21\nv_xor_b32 v23, v23, v22\nv_lshlrev_b32 v23, 4, v23\nv_lshl_add_u32 v23, v20, 7, v23")
            a(f"v_add_u32 v{XRb+q}, s{T0+9}, v23")
        a("v_bfe_u32 v20, v1, 2, 2\nv_lshl_add_u32 v20, v21, 3, v20\nv_mul_u32_u24 v20, 192, v20")
        a("v_and_b32 v22, 3, v1\nv_lshl_add_u32 v20, v22, 3, v20\nv_bfe_u32 v22, v1, 4, 1")
        a(f"v_mul_u32_u24 v23, {P_UP}, v22\nv_add3_u32 v{self.V_GU0}, v20, v23, 0")
        a(f"v_lshl_add_u32 v20, v22, 5, v20\nv_add_u32 v{self.V_Q0}, {P_QKV}, v20")
        a(f"s_mov_b32 s{self.S_HIM}, 0xffff0000")
        a(f"s_mov_b32 s{T0+11}, 0x3f803f80")
        for i in range(4):
            a(f"v_mov_b32 v{self.V_ST+i}, 0")
        a(f"v_mov_b32 v231, s{T0+11}")
        for i in range(144):
            a(f"v_mov_b32 v{self.ACC+i}, 0")
        if self.mode == "mega":
            self.attn_prefill()
        a(f"s_mov_b32 s{self.S_RD}, {W0 + 2*STG}\ns_mov_b32 s{self.S_LD}, {W0 + 2*STG}")
        for lb in range(8):
            a(f"; need @x{lb}")
            if lb + 3 < 8:
                self.x_dma(lb + 3)
            if lb in (5, 6):
                l3, le = self.lab("w3"), self.lab("we")
                a(f"s_cbranch_vccnz {l3}")
                st = a.st.copy()
                for half in range(2):
                    m, d = self.w_dma_half(half)
                    a.many(m + ["s_nop 0"] + d + self.w_adv())
                a(f"s_branch {le}")
                a.raw(f"{l3}:")
                a.st = st
                for i in range(6):
                    a(f"buffer_load_dword v{self.V_CT + 3}, v{XO}, {srd(SX)}, 0 offen ; spare slot".replace(f"v{self.V_CT+3}", "v255"))
                a.st.vm[-6:] = [set() for _ in range(6)]
                a.raw(f"{le}:")
                if lb == 5:
                    a(f"s_mov_b32 s{self.S_LD}, {W0}")
                else:
                    a.many(self.w_wrap())
            dst = self.XR + 16 * lb if lb < 2 else self.V_T
            pos = ((lb + 6) & 7) * 16384
            for q in range(4):
                if pos < 65536:
                    a(f"ds_read_b128 {vr(dst + 4*q, 4)}, v{XRb+q} offset:{pos}")
                else:
                    a(f"v_add_u32 v252, 65536, v{XRb+q}\nds_read_b128 {vr(dst + 4*q, 4)}, v252 offset:{pos - 65536}")
            for d in range(16):
                a(f"v_dot2c_f32_bf16 v{self.V_ST + (d & 1)}, v{dst+d}, v231\nv_dot2c_f32_bf16 v{self.V_ST + 2 + (d & 1)}, v{dst+d}, v{dst+d}")
            if lb == 1:
                a("s_barrier")
        ST, M, RS = self.V_ST, self.V_M, self.V_RS
        a(f"v_add_f32 v{ST}, v{ST}, v{ST+1}\nv_add_f32 v{ST+2}, v{ST+2}, v{ST+3}")
        a(f"v_mov_b32 v{ST+1}, v{ST}\nv_mov_b32 v{ST+3}, v{ST+2}")
        a(f"v_permlane32_swap_b32 v{ST}, v{ST+1}\nv_permlane32_swap_b32 v{ST+2}, v{ST+3}")
        a(f"v_add_f32 v{ST}, v{ST}, v{ST+1}\nv_add_f32 v{ST+2}, v{ST+2}, v{ST+3}")
        a(f"v_mul_f32 v{M}, {f2u(1/512):#x}, v{ST}\nv_mul_f32 v{ST+2}, {f2u(1/512):#x}, v{ST+2}")
        a(f"v_fma_f32 v{ST+2}, -v{M}, v{M}, v{ST+2}\nv_max_f32 v{ST+2}, 0, v{ST+2}\nv_add_f32 v{ST+2}, {f2u(1e-5):#x}, v{ST+2}")
        a(f"v_rsq_f32 v{RS}, v{ST+2}")
        a.many(self.center(0, 0))
        a(f"ds_read_b128 {vr(self.XR, 4)}, v{XRb} offset:0")
        a("s_waitcnt vmcnt(6)\ns_barrier")
        a(f"v_add_u32 v{self.V_GU}, s{self.S_RD}, v{self.V_GU0}\nv_add_u32 v{self.V_Q}, s{self.S_RD}, v{self.V_Q0}")
        for k in range(self.AHEAD):
            a.many(self.wread(k))
        a(f"s_mov_b32 s{self.S_IT}, 0")

    def rstd_rows(self):
        a = self.a
        a(f"s_lshl_b32 s{T0+9}, s{S_W}, 7\ns_add_u32 s{T0+9}, s{T0+9}, {LDS_SCR}")
        a(f"v_and_b32 v252, 31, v1\nv_lshl_add_u32 v252, v252, 2, s{T0+9}\nds_write_b32 v252, v{self.V_RS}")
        a(f"v_lshrrev_b32 v253, 5, v1\nv_lshl_add_u32 v253, v253, 4, s{T0+9}\ns_waitcnt lgkmcnt(0)")
        for j in range(4):
            a(f"ds_read_b128 {vr(self.V_T + 4*j, 4)}, v253 offset:{32*j}")

    def p1_loop(self, nv):
        a = self.a
        body = []
        for step in range(8):
            gaps = [[] for _ in range(9)]
            cen = self.center((step + 1) % 8, (step + 1) & 1)
            p = step
            off = 0 if p < 3 else (16384 if p < 7 else 32768)
            refill = f"ds_read_b128 {vr(self.XR + 4*((p+1) % 8), 4)}, v{self.V_XR + (p+1) % 4} offset:{off}"
            pre = [[] for _ in range(9)]
            if step & 1:
                gb = 9 - self.AHEAD
                bnd = ["s_waitcnt vmcnt(0)", "s_barrier", f"s_mov_b32 s{self.S_RD}, s{self.S_LD}",
                       f"s_add_u32 s{self.S_LD}, s{self.S_LD}, {STG}",
                       f"v_add_u32 v{self.V_GU}, s{self.S_RD}, v{self.V_GU0}",
                       f"s_cmp_ge_u32 s{self.S_LD}, {W0 + 3*STG}",
                       f"s_cselect_b32 s{self.S_LD}, {W0}, s{self.S_LD}",
                       f"v_add_u32 v{self.V_Q}, s{self.S_RD}, v{self.V_Q0}"]
                pre[gb] = bnd
                if step == 5:
                    gaps[gb - 1] += [f"s_cmp_eq_u32 s{self.S_IT}, 3", "s_cselect_b64 vcc, -1, vcc"]
                for half in range(2):
                    lbl = self.lab("sk")
                    m, d = self.w_dma_half(half)
                    grp = [f"s_cbranch_vccnz {lbl}"] + m + self.w_adv_late(half, d) + [f"{lbl}:"]
                    gaps[gb + 1 + half] += grp
                if step in (1, 5):
                    pass
                free = [g for g in range(9) if g not in (gb, gb + 1, gb + 2)]
            else:
                free = list(range(9))
            n = len(free)
            for i, g in enumerate(free):
                lo, hi = len(cen) * i // n, len(cen) * (i + 1) // n
                gaps[g] += cen[lo:hi]
            gaps[free[-1]].append(refill)
            if step in (3, 7):
                gaps[8] += self.w_wrap()
            for u in range(9):
                k = step * 9 + u
                acc = vr(self.ACC + 16 * u, 16)
                wf = vr(self.WF + 4 * (k % self.NWF), 4)
                cf = vr(self.CB + 4 * (step & 1), 4)
                if k % 2 == 0:
                    body.append(f"; need {wf},{vr(self.WF + 4*((k+1) % self.NWF), 4)}")
                isv = u >= 9 - nv
                body.append(f"v_mfma_f32_32x32x16_bf16 {acc}, {cf if isv else wf}, {wf if isv else cf}, {acc}")
                body += pre[u]
                body += self.wread(k + self.AHEAD)
                body += gaps[u]
        tail = [f"v_add_u32 v{self.V_XR+q}, 0x8000, v{self.V_XR+q}" for q in range(4)]
        lbl = self.lab("p1")
        tail += [f"s_add_u32 s{self.S_IT}, s{self.S_IT}, 1", f"s_cmp_lt_u32 s{self.S_IT}, 4", f"s_cbranch_scc1 {lbl}"]
        a.loop(lbl, body, tail)
        a.st.vm = []
        a("s_waitcnt lgkmcnt(0)")

    def w_adv_late(self, half, d):
        return ["s_nop 0"] + d + self.w_adv()

    def qkv_epilogue(self, nv):
        a = self.a
        RS = self.V_RS
        t = T0 + 9
        a(f"s_lshl_b32 s{t}, s{S_R}, 2\ns_add_u32 s{t}, s{t}, s{S_W}\ns_lshl_b32 s{t}, s{t}, 15")
        a("v_lshlrev_b32 v2, 4, v1")
        if nv:
            a("v_and_b32 v3, 15, v1\nv_lshlrev_b32 v3, 4, v3\nv_lshrrev_b32 v4, 5, v1\nv_lshl_add_u32 v3, v4, 8, v3")
            a("v_bfe_u32 v4, v1, 4, 1\nv_lshl_add_u32 v3, v4, 10, v3")
        sc1 = " sc1" if self.mode == "mega" else ""
        for i in range(3):
            acc = self.ACC + 16 * (6 + i)
            a(f"s_mul_i32 s{t+1}, s{S_G}, 3\ns_add_u32 s{t+1}, s{t+1}, {i}")
            a(f"s_lshr_b32 s{t+2}, s{t+1}, 4\ns_and_b32 s{t+1}, s{t+1}, 15\ns_lshl_b32 s{t+1}, s{t+1}, 11\ns_add_u32 s{t+1}, s{t+1}, s{t}")
            isv = i >= 3 - nv
            if not isv:
                a(f"s_cmp_eq_u32 s{t+2}, 0\ns_cselect_b32 s3, {f2u(0.25*math.log2(math.e)):#x}, 1.0\nv_mul_f32 v4, s3, v{RS}")
            a(f"s_lshl_b32 s{t+2}, s{t+2}, 21\ns_add_u32 s{t+1}, s{t+1}, s{t+2}")
            for p in range(8):
                if isv:
                    a(f"v_pk_mul_f32 {vr(acc+2*p,2)}, {vr(acc+2*p,2)}, {vr(self.V_T+2*p,2)}")
                else:
                    a(f"v_pk_mul_f32 {vr(acc+2*p,2)}, {vr(acc+2*p,2)}, v[4:5] op_sel_hi:[1,0]")
            dst = self.XR + 8 * i
            for p in range(8):
                a(f"v_cvt_pk_bf16_f32 v{dst+p}, v{acc+2*p}, v{acc+2*p+1}")
            for h in range(2):
                if isv:
                    a(f"buffer_store_dwordx4 {vr(dst+4*h,4)}, v3, {srd(SWS)}, s{t+1} offen offset:{512*h}{sc1}")
                else:
                    a(f"buffer_store_dwordx4 {vr(dst+4*h,4)}, v2, {srd(SWS)}, s{t+1} offen offset:{1024*h}{sc1}")

    def gelu(self, end):
        a = self.a
        RS = self.V_RS
        t = T0 + 9
        c = math.sqrt(2 / math.pi)
        k1 = -2 * c * math.log2(math.e)
        a(f"v_mul_f32 v4, {f2u(k1):#x}, v{RS}\nv_mul_f32 v8, v{RS}, v{RS}\nv_mul_f32 v6, v4, v8\nv_mul_f32 v6, {f2u(0.044715):#x}, v6\nv_rcp_f32 v8, v8")
        a(f"s_lshl_b32 s{t}, s{S_R}, 2\ns_add_u32 s{t}, s{t}, s{S_W}\ns_mul_i32 s{t}, s{t}, {NKG}")
        a(f"s_mul_i32 s{t+1}, s{S_G}, 6\ns_add_u32 s{t}, s{t}, s{t+1}\ns_add_u32 s{t}, s{t}, 32\ns_lshl_b32 s{t}, s{t}, 10\ns_add_u32 s{t}, s{t}, {WS_F}")
        sc1 = " sc1" if self.mode == "mega" else ""
        T = self.WF
        for u in range(6):
            if u in (0, 2):
                a(f"s_cmp_ge_u32 s{S_G}, {15 if u == 0 else 14}\ns_cbranch_scc1 {end}")
            g, up = self.ACC + 16 * u, self.ACC + 16 * u + 8
            dst = self.CB + 4 * (u & 1)
            bc = "op_sel_hi:[1,0,0]"
            for p in range(4):
                a(f"v_pk_mul_f32 {vr(T+2*p,2)}, {vr(g+2*p,2)}, {vr(g+2*p,2)}")
            for p in range(4):
                a(f"v_pk_fma_f32 {vr(T+2*p,2)}, {vr(T+2*p,2)}, v[6:7], v[4:5] {bc}")
            for p in range(4):
                a(f"v_pk_mul_f32 {vr(T+2*p,2)}, {vr(T+2*p,2)}, {vr(g+2*p,2)}")
            for p in range(8):
                a(f"v_exp_f32 v{T+p}, v{T+p}")
            for p in range(4):
                a(f"v_pk_mul_f32 {vr(g+2*p,2)}, {vr(g+2*p,2)}, {vr(up+2*p,2)}")
            for p in range(4):
                a(f"v_pk_fma_f32 {vr(T+2*p,2)}, {vr(T+2*p,2)}, v[8:9], v[8:9] {bc}")
            for p in range(8):
                a(f"v_rcp_f32 v{T+p}, v{T+p}")
            a("s_nop 0")
            for p in range(4):
                a(f"v_pk_mul_f32 {vr(g+2*p,2)}, {vr(g+2*p,2)}, {vr(T+2*p,2)}")
            for p in range(4):
                a(f"v_cvt_pk_bf16_f32 v{dst+p}, v{g+2*p}, v{g+2*p+1}")
            a(f"buffer_store_dwordx4 {vr(dst,4)}, v2, {srd(SWS)}, s{t} offen offset:{1024*(u & 3)}{sc1}")
            if u == 3:
                a(f"s_add_u32 s{t}, s{t}, 4096")

    def phase1(self, done):
        a = self.a
        self.p1_start()
        self.mk_srd(SWS, 22, WS_SIZE)
        l1, l3 = self.lab("nv1"), self.lab("nv3")
        a(f"s_cmp_eq_u32 s{S_G}, 10\ns_cbranch_scc1 {l1}\ns_cmp_gt_u32 s{S_G}, 10\ns_cbranch_scc1 {l3}")
        st = a.st.copy()
        lg = self.lab("gelu")
        for nv, l in ((0, None), (1, l1), (3, l3)):
            if l:
                a.raw(f"{l}:")
            a.st = st.copy()
            if nv:
                self.rstd_rows()
            self.p1_loop(nv)
            self.qkv_epilogue(nv)
            if nv != 3:
                a(f"s_branch {lg}")
        a.raw(f"{lg}:")
        self.gelu(done)

    AQ, AK, AV, AF = 0, 8, 48, 128
    SB3 = (16, 32, 48)
    VM, VC, VO, VP, VPD, VPM = 64, 80, 96, 128, 136, 144

    def attn_prefill(self):
        a = self.a
        a("v_mov_b32 v254, 0x3f803f80")
        for i in range(80):
            a(f"v_accvgpr_write_b32 a{self.AV+i}, v254")

    def attn_setup(self):
        a = self.a
        a("v_and_b32 v2, 31, v1\nv_lshrrev_b32 v3, 5, v1\nv_lshlrev_b32 v3, 2, v3\nv_sub_u32 v2, v2, v3")
        for r in range(16):
            a(f"v_cmp_le_i32 s[{S_MASK+2*r}:{S_MASK+2*r+1}], {8*(r//4) + r % 4}, v2")
        a("v_mov_b32 v4, 0xffff\nv_mov_b32 v5, 0xffff0000")
        for p in range(8):
            a(f"v_cndmask_b32 v6, 0, v4, s[{S_MASK+4*p}:{S_MASK+4*p+1}]\nv_cndmask_b32 v7, 0, v5, s[{S_MASK+4*p+2}:{S_MASK+4*p+3}]")
            a(f"v_or_b32 v{self.VPM+p}, v6, v7")
        a("v_mov_b32 v8, 0xff800000")

    def attn_loads(self, first):
        a = self.a
        t = T0
        sc1 = " sc1" if self.mode == "mega" else ""
        a(f"s_lshl_b32 s{t+1}, s{S_NG}, 2\ns_add_u32 s{t+1}, s{t+1}, s{S_W}")
        a(f"s_lshl_b32 s{t}, s{S_TB}, 6\ns_add_u32 s{t}, s{t}, s{t+1}\ns_lshl_b32 s{t}, s{t}, 10")
        a("v_lshlrev_b32 v9, 4, v1")
        a("v_and_b32 v10, 15, v1\nv_lshlrev_b32 v10, 4, v10\nv_lshrrev_b32 v11, 5, v1\nv_lshl_add_u32 v10, v11, 8, v10")
        a(f"s_add_u32 s{t+2}, s{t}, 32768")
        a(f"buffer_load_dwordx4 {ar(self.AQ,4)}, v9, {srd(SWS)}, s{t} offen{sc1}")
        order = [i for i in (8, 0, 1, 2, 3, 4, 5, 6, 7, 9) if i >= first]
        for n, i in enumerate(order):
            a(f"s_add_u32 s{t+3}, s{t}, {(WS_K + (i-8)*32768) & 0xffffffff:#x}")
            a(f"buffer_load_dwordx4 {ar(self.AK+4*i,4)}, v9, {srd(SWS)}, s{t+3} offen{sc1}")
        a(f"buffer_load_dwordx4 {ar(self.AQ+4,4)}, v9, {srd(SWS)}, s{t+2} offen{sc1}")
        a("s_mov_b32 exec_lo, 0xffff\ns_mov_b32 exec_hi, 0xffff")
        for i in order:
            a(f"s_add_u32 s{t+3}, s{t}, {(WS_V + (i-8)*32768) & 0xffffffff:#x}")
            for u in range(2):
                a(f"buffer_load_dwordx4 {ar(self.AV+8*i+4*u,4)}, v10, {srd(SWS)}, s{t+3} offen offset:{512*u}{sc1}")
        a("s_mov_b64 exec, -1")

    def attn_tile_pair(self, first, extra=None):
        a = self.a
        t = T0
        sc1 = " sc1" if self.mode == "mega" else ""
        mf = "v_mfma_f32_32x32x16_bf16"
        VM, VC, VP, VPD, VPM = self.VM, self.VC, self.VP, self.VPD, self.VPM
        pend_final = []
        for qt in range(2):
            Q = ar(self.AQ + 4 * qt, 4)
            O = self.VO + 16 * qt
            K = lambda i: ar(self.AK + 4 * i, 4)
            V = lambda i, u: ar(self.AV + 8 * i + 4 * u, 4)
            old, diag = qt, qt + 8
            old_ok = old >= first
            mids = [i for i in range(qt + 1, qt + 8) if i >= first]
            S = self.SB3
            a(f"{mf} {vr(S[1],16)}, {K(diag)}, {Q}, 0")
            if old_ok:
                a(f"{mf} {vr(S[0],16)}, {K(old)}, {Q}, 0")
            if mids:
                a(f"{mf} {vr(S[2],16)}, {K(mids[0])}, {Q}, 0")
            a.many(pend_final)
            pend_final = []
            for r in range(16):
                src = f"v{S[0]+r}" if old_ok else "v8"
                a(f"v_cndmask_b32 v{VM+r}, {src}, v{S[1]+r}, s[{S_MASK+2*r}:{S_MASK+2*r+1}]")
            bufs = [S[2], S[0], S[1]]
            if len(mids) > 1:
                a(f"{mf} {vr(bufs[1],16)}, {K(mids[1])}, {Q}, 0")
            a(f"v_max_f32 v12, v{VM}, v{VM+1}\nv_max_f32 v13, v{VM+2}, v{VM+3}")
            for p in range(2, 8):
                a(f"v_max3_f32 v{12+(p&1)}, v{12+(p&1)}, v{VM+2*p}, v{VM+2*p+1}")
            for n, i in enumerate(mids):
                if n + 2 < len(mids):
                    a(f"{mf} {vr(bufs[(n+2)%3],16)}, {K(mids[n+2])}, {Q}, 0")
                b = bufs[n % 3]
                for p in range(8):
                    a(f"v_max3_f32 v{12+(p&1)}, v{12+(p&1)}, v{b+2*p}, v{b+2*p+1}")
            a("v_max_f32 v12, v12, v13\nv_mov_b32 v13, v12\nv_permlane32_swap_b32 v12, v13\nv_max_f32 v12, v12, v13")
            if mids:
                for r in range(16):
                    a(f"v_sub_f32 v{VC+r}, 0, v12")
            for n in range(min(2, len(mids))):
                a(f"{mf} {vr(S[n],16)}, {K(mids[n])}, {Q}, {vr(VC,16)}")
            for r in range(16):
                a(f"v_sub_f32 v{VM+r}, v{VM+r}, v12")
            for r in range(16):
                a(f"v_exp_f32 v{VM+r}, v{VM+r}")
            for p in range(8):
                a(f"v_cvt_pk_bf16_f32 v{VP+p}, v{VM+2*p}, v{VM+2*p+1}")
            pv = []
            if old_ok:
                for p in range(8):
                    a(f"v_and_b32 v{VPD+p}, v{VP+p}, v{VPM+p}")
                for p in range(8):
                    a(f"v_xor_b32 v{VP+p}, v{VP+p}, v{VPD+p}")
                pv = [f"{mf} {vr(O,16)}, {V(diag,0)}, {vr(VPD,4)}, 0", f"{mf} {vr(O,16)}, {V(diag,1)}, {vr(VPD+4,4)}, {vr(O,16)}",
                      f"{mf} {vr(O,16)}, {V(old,0)}, {vr(VP,4)}, {vr(O,16)}", f"{mf} {vr(O,16)}, {V(old,1)}, {vr(VP+4,4)}, {vr(O,16)}"]
            else:
                pv = [f"{mf} {vr(O,16)}, {V(diag,0)}, {vr(VP,4)}, 0", f"{mf} {vr(O,16)}, {V(diag,1)}, {vr(VP+4,4)}, {vr(O,16)}"]
            for n, i in enumerate(mids):
                b = S[n % 3]
                ms = list(pv)
                if n + 2 < len(mids):
                    ms.append(f"{mf} {vr(S[(n+2)%3],16)}, {K(mids[n+2])}, {Q}, {vr(VC,16)}")
                ex = [f"v_exp_f32 v{b+r}, v{b+r}" for r in range(16)]
                a.many(interleave(ms, ex, per=16 // len(ms) if len(ms) > 3 else 4))
                for p in range(8):
                    a(f"v_cvt_pk_bf16_f32 v{VP+p}, v{b+2*p}, v{b+2*p+1}")
                pv = [f"{mf} {vr(O,16)}, {V(i,0)}, {vr(VP,4)}, {vr(O,16)}", f"{mf} {vr(O,16)}, {V(i,1)}, {vr(VP+4,4)}, {vr(O,16)}"]
            a.many(pv)
            fin = [f"v_rcp_f32 v14, v{O+8}", "s_nop 0"]
            fin += [f"v_mul_f32 v{O+r}, v{O+r}, v14" for r in range(8)]
            fin += [f"v_cvt_pk_bf16_f32 v{O+8+p}, v{O+2*p}, v{O+2*p+1}" for p in range(4)]
            fin += [f"buffer_store_dwordx4 {vr(O+8,4)}, v9, {srd(SWS)}, s{t+4+qt} offen{sc1}"]
            pend_final = fin
        a.many(pend_final)

    def phase2(self, done):
        a = self.a
        t = T0
        self.attn_setup()
        a(f"s_lshl_b32 s{t+1}, s{S_NG}, 2\ns_add_u32 s{t+1}, s{t+1}, s{S_W}")
        a(f"s_mul_i32 s{t+4}, s{S_TB}, {2*NKG}\ns_add_u32 s{t+4}, s{t+4}, s{t+1}\ns_lshl_b32 s{t+4}, s{t+4}, 10\ns_add_u32 s{t+4}, s{t+4}, {WS_F}")
        a(f"s_add_u32 s{t+5}, s{t+4}, {NKG*1024}")
        labs = {f: self.lab(f"at{f}") for f in (8, 6, 4, 2)}
        for tb, f in enumerate((8, 6, 4, 2)):
            a(f"s_cmp_eq_u32 s{S_TB}, {tb}\ns_cbranch_scc1 {labs[f]}")
        st = a.st.copy()
        for f in (0, 2, 4, 6, 8):
            if f:
                a.raw(f"{labs[f]}:")
            a.st = st.copy()
            self.attn_loads(f)
            self.attn_tile_pair(f)
            a(f"s_branch {done}")

    P3ACC, P3WF = 16, 160
    NSLOT = 20

    def p3_setup(self):
        a = self.a
        t = T0
        self.S_N, self.S_WI, self.S_FI, self.S_U0, self.S_R3, self.S_FB, self.S_LB = t, t+1, t+2, t+3, t+4, t+5, t+6
        self.mk_srd(SWD, 16, 1376 * 1024)
        self.mk_srd(SWO, 8, 512 * 1024)
        self.mk_srd(SOUT, 18, 2048 * 1024)
        a(f"s_cmp_ge_u32 s{S_W}, 2\ns_cselect_b32 s{self.S_N}, 21, 22")
        a(f"s_mul_i32 s{self.S_U0}, s{S_W}, 22\ns_cmp_eq_u32 s{S_W}, 3\ns_cselect_b32 s{self.S_U0}, 65, s{self.S_U0}")
        a(f"s_and_b32 s{self.S_R3}, s{S_TB}, 3\ns_lshl_b32 s{self.S_R3}, s{self.S_R3}, 1\ns_add_u32 s{self.S_R3}, s{self.S_R3}, s{S_NG}\ns_and_b32 s{self.S_R3}, s{self.S_R3}, 7")
        if not self.o.get("rot", 1):
            a(f"s_mov_b32 s{self.S_R3}, 0")
        a(f"s_mul_i32 s{self.S_WI}, s{self.S_R3}, 11\ns_lshr_b32 s{self.S_WI}, s{self.S_WI}, 2\ns_mov_b32 s{self.S_FI}, s{self.S_WI}")
        a(f"s_mul_i32 s{self.S_FB}, s{S_TB}, {2*NKG*1024}\ns_add_u32 s{self.S_FB}, s{self.S_FB}, {WS_F}")
        a(f"s_mul_i32 s{self.S_LB}, s{S_W}, {self.NSLOT*2048}")
        a(f"v_lshlrev_b32 v9, 4, v1\nv_add_u32 v240, {NKG*1024}, v9")
        a("v_lshrrev_b32 v2, 3, v1\nv_bfe_u32 v3, v1, 4, 1\nv_lshlrev_b32 v3, 2, v3\nv_and_b32 v4, 7, v1\nv_xor_b32 v3, v3, v4")
        a(f"v_lshlrev_b32 v3, 4, v3\nv_lshl_add_u32 v3, v2, 10, v3\ns_lshl_b32 s{t+7}, s{S_NG}, 7\nv_add_u32 v241, s{t+7}, v3\nv_add_u32 v242, 7168, v241")
        a("v_lshrrev_b32 v2, 5, v1\nv_bfe_u32 v3, v1, 2, 2\nv_lshl_add_u32 v2, v2, 2, v3\nv_lshlrev_b32 v2, 7, v2")
        a("v_bfe_u32 v3, v1, 3, 1\nv_lshl_add_u32 v2, v3, 6, v2\nv_bfe_u32 v3, v1, 4, 1\nv_lshl_add_u32 v2, v3, 5, v2")
        a(f"v_and_b32 v3, 3, v1\nv_lshl_add_u32 v2, v3, 3, v2\nv_add_u32 v243, s{self.S_LB}, v2\nv_xor_b32 v244, 64, v243")

    def p3_wdma(self, p):
        t = T0 + 7
        slot = p % self.NSLOT
        L = []
        if p < 22:
            L += [f"s_add_u32 s{t}, s{self.S_U0}, s{self.S_WI}", f"s_lshl_b32 s{t}, s{t}, 14",
                  f"s_add_u32 m0, s{self.S_LB}, {slot*2048}",
                  f"s_add_u32 s{self.S_WI}, s{self.S_WI}, 1"]
            d = SWD
            post = [f"s_cmp_ge_u32 s{self.S_WI}, s{self.S_N}", f"s_cselect_b32 s{self.S_WI}, 0, s{self.S_WI}"]
        else:
            L += [f"s_add_u32 s{t}, s{self.S_R3}, {p-22}", f"s_and_b32 s{t}, s{t}, 7", f"s_lshl_b32 s{t+1}, s{S_W}, 3",
                  f"s_add_u32 m0, s{self.S_LB}, {slot*2048}",
                  f"s_add_u32 s{t}, s{t}, s{t+1}", f"s_lshl_b32 s{t}, s{t}, 14"]
            d = SWO
            post = []
        L += [f"buffer_load_dwordx4 v241, {srd(d)}, s{t} offen lds",
              f"buffer_load_dwordx4 v242, {srd(d)}, s{t} offen offset:1024 lds"]
        return L + post

    def p3_fload(self, p):
        t = T0 + 9
        sc1 = " sc1" if self.mode == "mega" else ""
        f = self.AF + 8 * (p % 16)
        L = []
        if p < 22:
            L += [f"s_add_u32 s{t}, s{self.S_U0}, s{self.S_FI}", f"s_add_u32 s{t}, s{t}, 32", f"s_lshl_b32 s{t}, s{t}, 10",
                  f"s_add_u32 s{t}, s{t}, s{self.S_FB}"]
            if p == 21:
                L += [f"s_cmp_eq_u32 s{self.S_N}, 21", f"s_cselect_b32 s{t}, 0x40000000, s{t}"]
            post = [f"s_add_u32 s{self.S_FI}, s{self.S_FI}, 1", f"s_cmp_ge_u32 s{self.S_FI}, s{self.S_N}",
                    f"s_cselect_b32 s{self.S_FI}, 0, s{self.S_FI}"]
        else:
            L += [f"s_add_u32 s{t}, s{self.S_R3}, {p-22}", f"s_and_b32 s{t}, s{t}, 7", f"s_lshl_b32 s{t+1}, s{S_W}, 3",
                  f"s_add_u32 s{t}, s{t}, s{t+1}", f"s_lshl_b32 s{t}, s{t}, 10", f"s_add_u32 s{t}, s{t}, s{self.S_FB}"]
            post = []
        L += [f"buffer_load_dwordx4 {ar(f,4)}, v9, {srd(SWS)}, s{t} offen{sc1}",
              f"buffer_load_dwordx4 {ar(f+4,4)}, v240, {srd(SWS)}, s{t} offen{sc1}"]
        return L + post

    def p3_wread(self, p):
        slot = p % self.NSLOT
        f = self.P3WF + 8 * (p % 3)
        return [f"ds_read_b64_tr_b16 {vr(f + 4*nt + 2*aa, 2)}, v{243+nt} offset:{slot*2048 + aa*1024}"
                for nt in range(2) for aa in range(2)]

    def p3_main(self):
        a = self.a
        mf = "v_mfma_f32_32x32x16_bf16"
        NP = 30
        a.many(self.p3_wread(0))
        a.many(self.p3_wread(1))
        for p in range(NP):
            ms = []
            for tb2 in range(2):
                for nt in range(2):
                    acc = vr(self.P3ACC + 16 * (2 * tb2 + nt), 16)
                    ms.append(f"{mf} {acc}, {vr(self.P3WF + 8*(p % 3) + 4*nt, 4)}, {ar(self.AF + 8*(p % 16) + 4*tb2, 4)}, {acc if p else 0}")
            fill = []
            if p + 2 < NP:
                fill += self.p3_wread(p + 2)
            if p >= 1 and p - 1 + self.NSLOT < NP:
                fill += self.p3_wdma(p - 1 + self.NSLOT)
            if p >= 1 and p - 1 + 16 < NP:
                fill += self.p3_fload(p - 1 + 16)
            a.many(interleave(ms, fill))

    def p3_final(self):
        a = self.a
        t = T0
        a(f"s_lshl_b32 s{t}, s{S_TB}, 16\ns_lshl_b32 s{t+1}, s{S_W}, 14\ns_add_u32 s{t}, s{t}, s{t+1}\ns_lshl_b32 s{t+1}, s{S_NG}, 7\ns_add_u32 s{t}, s{t}, s{t+1}")
        a("v_lshrrev_b32 v2, 3, v1\nv_and_b32 v3, 7, v1\nv_lshlrev_b32 v4, 4, v3\nv_lshl_add_u32 v4, v2, 10, v4\nv_add_u32 v5, 8192, v4")
        a(f"buffer_load_dwordx4 v[200:203], v4, {srd(SX)}, s{t} offen\nbuffer_load_dwordx4 v[204:207], v5, {srd(SX)}, s{t} offen")
        PITCH, REG = 272, 64 * 272
        a(f"v_and_b32 v6, 31, v1\nv_mul_u32_u24 v6, {PITCH}, v6\nv_lshrrev_b32 v7, 5, v1\nv_lshl_add_u32 v6, v7, 4, v6")
        a(f"s_mul_i32 s{t+1}, s{S_W}, {REG}\nv_add_u32 v6, s{t+1}, v6")
        a(f"s_mul_i32 s{t+1}, s{S_W}, {16*PITCH}\nv_mul_u32_u24 v7, {PITCH}, v2\nv_lshl_add_u32 v7, v3, 5, v7\nv_add_u32 v7, s{t+1}, v7")
        a("s_waitcnt lgkmcnt(0)\ns_barrier")
        for tb2 in range(2):
            for nt in range(2):
                acc = self.P3ACC + 16 * (2 * tb2 + nt)
                for j in range(4):
                    a(f"ds_write_b128 v6, {vr(acc+4*j,4)} offset:{tb2*32*PITCH + nt*128 + j*32}")
        a("s_waitcnt lgkmcnt(0)\ns_barrier")
        R = 96
        for pp in range(2):
            for w in range(4):
                for h in range(2):
                    a(f"ds_read_b128 {vr(R + 32*pp + 8*w + 4*h, 4)}, v7 offset:{w*REG + pp*8*PITCH + h*16}")
        a(f"s_mov_b32 s{t+2}, 0xffff0000")
        for pp in range(2):
            b = R + 32 * pp
            x = 200 + 4 * pp
            for d in range(4):
                a(f"v_lshlrev_b32 v{208+2*d}, 16, v{x+d}\nv_and_b32 v{209+2*d}, s{t+2}, v{x+d}")
            for w in range(4):
                for d in range(4):
                    a(f"v_pk_add_f32 {vr(208+2*d,2)}, {vr(208+2*d,2)}, {vr(b+8*w+2*d,2)}")
            for d in range(4):
                a(f"v_cvt_pk_bf16_f32 v{x+d}, v{208+2*d}, v{209+2*d}")
            a(f"buffer_store_dwordx4 {vr(x,4)}, v{4+pp}, {srd(SOUT)}, s{t} offen")

    def phase3_standalone(self):
        a = self.a
        self.p3_setup()
        for p in range(self.NSLOT):
            a.many(self.p3_wdma(p))
            if p < 16:
                a.many(self.p3_fload(p))
        self.p3_main()
        self.p3_final()

    def kernel_head(self, name):
        self.a.raw(f".globl {name}\n.p2align 8\n.type {name},@function\n{name}:")
        self.a.st = WaitState()

    def desc(self, name):
        return f""".amdhsa_kernel {name}
  .amdhsa_next_free_vgpr 512
  .amdhsa_next_free_sgpr 102
  .amdhsa_accum_offset 256
  .amdhsa_group_segment_fixed_size 0
  .amdhsa_kernarg_size 80
  .amdhsa_user_sgpr_count 2
  .amdhsa_user_sgpr_kernarg_segment_ptr 1
  .amdhsa_system_sgpr_workgroup_id_x 1
.end_amdhsa_kernel
"""

    def build_split(self):
        a = self.a
        names = ["p1_kernel", "p2_kernel", "p3_kernel"]
        head = "".join(f"; @launch kernel={n} grid=(256,1,1) block=(256,1,1) lds=163840\n" for n in names)
        head += '.amdgcn_target "amdgcn-amd-amdhsa--gfx950"\n.text\n'
        self.kernel_head(names[0])
        self.common("Lend1")
        self.phase1("Lend1")
        a.raw("Lend1:\ns_endpgm")
        self.kernel_head(names[1])
        self.common("Lend2")
        a("s_waitcnt lgkmcnt(0)")
        self.mk_srd(SWS, 22, WS_SIZE)
        self.attn_prefill()
        self.phase2("Lend2")
        a.raw("Lend2:\ns_endpgm")
        self.kernel_head(names[2])
        self.common("Lend3")
        a("s_waitcnt lgkmcnt(0)")
        self.mk_srd(SWS, 22, WS_SIZE)
        self.mk_srd(SX, 4, 2048 * 1024)
        self.phase3_standalone()
        a.raw("Lend3:\ns_endpgm")
        n = check_hazards(a.out)
        print("hazard pads inserted:", n, file=sys.stderr)
        tail = '.section .rodata,"a"\n.p2align 6\n' + "".join(self.desc(n) + ".p2align 6\n" for n in names)
        return head + a.text() + tail


if __name__ == "__main__":
    mode = sys.argv[1] if len(sys.argv) > 1 else "split"
    out = sys.argv[2] if len(sys.argv) > 2 else f"cdna_kernels/{NAME}.s"
    opts = dict(kv.split("=") for kv in sys.argv[3:])
    opts = {k: int(v) for k, v in opts.items()}
    g = Gen(mode, opts)
    txt = g.build_split() if mode == "split" else g.build_mega()
    open(out, "w").write(txt)
```

```python
import sys, math, struct
from asmlib import Asm, Ins, check_hazards, interleave, WaitState

NAME = "parallel_sum__sliding_block__glu_gated_geglu__prompt"


def f2u(x):
    return struct.unpack("<I", struct.pack("<f", x))[0]


WS_Q = 0
WS_K = 2 << 20
WS_V = 4 << 20
WS_F = 6 << 20
WS_FLAG = 14 << 20
WS_STAMP = 15 << 20
WS_SIZE = 16 << 20
NKG = 118
STG = 18496
P_UP = 6176
P_QKV = 12352
W0 = 163840 - 3 * STG
LDS_SCR = 98304
SX, SW, SWS, SWD, SWO, SOUT, SDBG = 24, 28, 32, 36, 40, 44, 48
S_W, S_R, S_G, S_ROT, S_TB, S_NG = 52, 53, 54, 55, 56, 57
T0 = 58
S_MASK = 70


def srd(n):
    return f"s[{n}:{n + 3}]"


def vr(b, n):
    return f"v[{b}:{b + n - 1}]" if n > 1 else f"v{b}"


def ar(b, n):
    return f"a[{b}:{b + n - 1}]" if n > 1 else f"a{b}"


class Gen:
    def __init__(self, mode, opts):
        self.mode = mode
        self.o = opts
        self.a = Asm()
        self.uid = 0

    def lab(self, s):
        self.uid += 1
        return f"L{s}_{self.uid}"

    def common(self, end):
        a = self.a
        a(f"s_cmp_ge_u32 s2, 256\ns_cbranch_scc1 {end}")
        a("s_load_dwordx16 s[4:19], s[0:1], 0\ns_load_dwordx4 s[20:23], s[0:1], 64")
        a("v_and_b32 v1, 63, v0\nv_lshrrev_b32 v2, 6, v0\ns_nop 0")
        a(f"v_readfirstlane_b32 s{S_W}, v2")
        a(f"s_and_b32 s{T0}, s2, 7\ns_lshr_b32 s{T0+1}, s2, 3")
        a(f"s_and_b32 s{S_R}, s{T0}, 1\ns_lshl_b32 s{S_R}, s{S_R}, 3\ns_and_b32 s{T0+2}, s{T0+1}, 7\ns_add_u32 s{S_R}, s{S_R}, s{T0+2}")
        a(f"s_lshr_b32 s{S_G}, s{T0}, 1\ns_lshl_b32 s{S_G}, s{S_G}, 2\ns_lshr_b32 s{T0+2}, s{T0+1}, 3\ns_add_u32 s{S_G}, s{S_G}, s{T0+2}")
        a(f"s_lshl_b32 s{S_TB}, s{T0}, 2\ns_and_b32 s{T0+2}, s{T0+1}, 3\ns_add_u32 s{S_TB}, s{S_TB}, s{T0+2}")
        a(f"s_lshr_b32 s{S_NG}, s{T0+1}, 2")
        a(f"s_and_b32 s{T0+2}, s{S_G}, 3\ns_lshl_b32 s{T0+2}, s{T0+2}, 1\ns_add_u32 s{S_ROT}, s{S_R}, s{T0+2}\ns_and_b32 s{S_ROT}, s{S_ROT}, 7")
        if not self.o.get("rot", 1):
            a(f"s_mov_b32 s{S_ROT}, 0")

    def stamp(self, i):
        if not self.o.get("stamp"):
            return
        a = self.a
        a(f"s_memtime s[10:11]\ns_memrealtime s[20:21]\ns_waitcnt lgkmcnt(0)\nv_writelane_b32 v255, s10, {i}\nv_writelane_b32 v255, s20, {32+i}")

    def stamp_store(self, kidx):
        if not self.o.get("stamp"):
            return
        a = self.a
        self.stamp(31)
        a(f"s_lshl_b32 s10, s2, 2\ns_add_u32 s10, s10, s{S_W}\ns_lshl_b32 s10, s10, 8\ns_add_u32 s10, s10, {WS_STAMP + kidx*(1<<18)}")
        a(f"v_lshlrev_b32 v2, 2, v1\nbuffer_store_dword v255, v2, {srd(SWS)}, s10 offen")

    def diag_kernel(self, kidx, i, usemax):
        a = self.a
        self.kernel_head("diag_kernel")
        a("s_cmp_ge_u32 s2, 1\ns_cbranch_scc1 Lendd\ns_load_dwordx4 s[20:23], s[0:1], 64\ns_waitcnt lgkmcnt(0)")
        self.mk_srd(SWS, 22, WS_SIZE)
        a(f"v_lshlrev_b32 v1, 10, v0\nv_add_u32 v1, {WS_STAMP}, v1\nv_add_u32 v2, {kidx*(1<<18)}, v1")
        a(f"buffer_load_dword v3, v1, {srd(SWS)}, 0 offen offset:128\nbuffer_load_dword v4, v2, {srd(SWS)}, 0 offen offset:{128+4*i}")
        a("v_mov_b32 v5, 0\nv_mov_b32 v6, -1\nv_mov_b32 v7, 0\nds_write_b32 v5, v6\nds_write_b32 v5, v6 offset:4\nds_write_b32 v5, v7 offset:8\ns_waitcnt lgkmcnt(0)\ns_barrier")
        a("ds_min_u32 v5, v3\nds_min_u32 v5, v4 offset:4\nds_max_u32 v5, v4 offset:8\ns_waitcnt lgkmcnt(0)\ns_barrier")
        a(f"ds_read_b32 v8, v5 offset:{0 if i < 0 else (8 if usemax else 4)}\ns_waitcnt lgkmcnt(0)\nv_readfirstlane_b32 s10, v8\ns_nop 4\ns_add_u32 s10, s10, 10000\ns_mov_b32 s14, 0")
        a.raw("Ldspin:")
        a("s_add_u32 s14, s14, 1\ns_cmp_gt_u32 s14, 50000\ns_cbranch_scc1 Lendd")
        a("s_memrealtime s[12:13]\ns_waitcnt lgkmcnt(0)\ns_sub_u32 s12, s12, s10\ns_cmp_lt_i32 s12, 0\ns_cbranch_scc1 Ldspin")
        a.raw("Lendd:\ns_endpgm")

    def mk_srd(self, d, p, size):
        self.a(f"s_mov_b32 s{d}, s{p}\ns_mov_b32 s{d+1}, s{p+1}\ns_mov_b32 s{d+2}, {size}\ns_mov_b32 s{d+3}, 0x20000")

    V_XO, V_XR, V_WO = 2, 6, 10
    V_GU0, V_Q0, V_GU, V_Q = 13, 14, 15, 224
    V_M, V_RS = 225, 226
    V_ST = 227
    V_T = 232
    V_CT = 248
    ACC, XR, CB, WF = 16, 160, 192, 200
    NWF, AHEAD = 6, 5
    S_XSO, S_WSO, S_RD, S_LD, S_PART, S_STR16, S_WLIM, S_IT, S_HIM = T0, T0+1, T0+2, T0+3, T0+4, T0+5, T0+6, T0+7, T0+8

    def x_dma(self, lb):
        a = self.a
        t = T0 + 9
        a(f"s_add_u32 s{t}, s{S_ROT}, {lb}\ns_and_b32 s{t}, s{t}, 7\ns_lshl_b32 s{t}, s{t}, 7\ns_add_u32 s{t}, s{t}, s{self.S_XSO}")
        a(f"s_lshl_b32 s{t+1}, s{S_W}, 12\ns_add_u32 m0, s{t+1}, {((lb + 6) & 7) * 16384}\ns_nop 0")
        for o in range(4):
            a(f"buffer_load_dwordx4 v{self.V_XO+o}, {srd(SX)}, s{t} offen offset:{o*1024} lds ; @w x{lb}")

    def w_dma_half(self, half):
        L = [f"s_add_u32 m0, s{self.S_LD}, s{self.S_PART}" if half == 0 else "s_add_u32 m0, m0, 3072"]
        L.append("s_nop 0") if False else None
        L2 = [f"buffer_load_dwordx4 v{self.V_WO+i}, {srd(SW)}, s{self.S_WSO} offen offset:{i*1024} lds" for i in range(3)]
        return [x for x in L if x], L2

    def w_adv(self):
        return [f"s_add_u32 s{self.S_WSO}, s{self.S_WSO}, s{self.S_STR16}"]

    def w_wrap(self):
        return [f"s_cmp_ge_u32 s{self.S_WSO}, s{self.S_WLIM}", f"s_cselect_b32 s{self.S_WSO}, 0, s{self.S_WSO}"]

    def center(self, xs, cb):
        L = []
        x, c, t = self.XR + 4 * xs, self.CB + 4 * cb, self.V_CT
        for d in range(4):
            t0, t1 = t + 2 * (d & 1), t + 2 * (d & 1) + 1
            L += [f"v_lshlrev_b32 v{t0}, 16, v{x+d}", f"v_and_b32 v{t1}, s{self.S_HIM}, v{x+d}",
                  f"v_sub_f32 v{t0}, v{t0}, v{self.V_M}", f"v_sub_f32 v{t1}, v{t1}, v{self.V_M}",
                  f"v_cvt_pk_bf16_f32 v{c+d}, v{t0}, v{t1}"]
        return L

    def wread(self, k):
        step, u = divmod(k % 72, 9)
        h = step & 1
        f = self.WF + 4 * (k % self.NWF)
        L = []
        for aa in range(2):
            if u < 6:
                off, b = (16 * h + 4 * aa) * 192 + u * 32, self.V_GU
            else:
                off, b = (16 * h + 4 * aa) * 192 + (u - 6) * 64, self.V_Q
            L.append(f"ds_read_b64_tr_b16 {vr(f + 2*aa, 2)}, v{b} offset:{off}")
        return L

    def p1_start(self):
        a = self.a
        XO, XRb, WO = self.V_XO, self.V_XR, self.V_WO
        a("v_lshrrev_b32 v20, 3, v1\nv_lshrrev_b32 v21, 4, v1\nv_and_b32 v22, 7, v1")
        for o in range(4):
            a(f"v_add_u32 v23, {4*o}, v21\nv_and_b32 v23, 7, v23\nv_xor_b32 v23, v23, v22\nv_lshlrev_b32 v23, 4, v23")
            a(f"v_lshl_add_u32 v23, v20, 10, v23\nv_add_u32 v{XO+o}, {o*8192 - o*1024}, v23")
        a(f"s_lshl_b32 s{self.S_XSO}, s{S_R}, 17\ns_lshl_b32 s{T0+9}, s{S_W}, 15\ns_add_u32 s{self.S_XSO}, s{self.S_XSO}, s{T0+9}")
        a("s_waitcnt lgkmcnt(0)")
        self.stamp(0)
        self.mk_srd(SX, 4, 2048 * 1024)
        for lb in range(3):
            self.x_dma(lb)
        a(f"s_cmp_eq_u32 s{S_W}, 1\ns_cselect_b32 s{SW}, s14, s12\ns_cselect_b32 s{SW+1}, s15, s13\ns_cselect_b32 s{self.S_PART}, {P_UP}, 0")
        a(f"s_cmp_eq_u32 s{S_G}, 15\ns_cselect_b32 s{SW+2}, 0, {512*2752}")
        a(f"s_mov_b32 s{T0+9}, 2752")
        a(f"s_cmp_ge_u32 s{S_W}, 2\ns_cselect_b32 s{SW}, s6, s{SW}\ns_cselect_b32 s{SW+1}, s7, s{SW+1}\ns_cselect_b32 s{SW+2}, {512*3072}, s{SW+2}")
        a(f"s_cselect_b32 s{self.S_PART}, {P_QKV}, s{self.S_PART}\ns_cselect_b32 s{T0+9}, 3072, s{T0+9}")
        a(f"s_mov_b32 s{SW+3}, 0x20000")
        a(f"s_lshl_b32 s{self.S_STR16}, s{T0+9}, 4\ns_lshl_b32 s{self.S_WLIM}, s{T0+9}, 9")
        a(f"s_lshl_b32 s{T0+10}, s{self.S_STR16}, 2\ns_mul_i32 s{self.S_WSO}, s{S_ROT}, s{T0+10}")
        a(f"s_mul_i32 s{T0+10}, s{S_G}, 192")
        for i in range(3):
            a(f"v_add_u32 v20, {64*i}, v1\nv_mul_u32_u24 v21, 683, v20\nv_lshrrev_b32 v21, 13, v21")
            a(f"v_mul_u32_u24 v22, 12, v21\nv_sub_u32 v22, v20, v22\nv_lshlrev_b32 v22, 4, v22")
            a(f"v_mul_lo_u32 v21, v21, s{T0+9}\nv_add3_u32 v21, v21, v22, s{T0+10}")
            a(f"v_subrev_u32 v{WO+i}, {1024*i}, v21" if i else f"v_mov_b32 v{WO}, v21")
        a(f"s_cmp_eq_u32 s{S_W}, 3\ns_cselect_b64 vcc, -1, 0")
        a("v_and_b32 v20, 31, v1\nv_lshrrev_b32 v21, 5, v1\nv_bfe_u32 v22, v1, 1, 3")
        a(f"s_lshl_b32 s{T0+9}, s{S_W}, 12")
        for q in range(4):
            a(f"v_add_u32 v23, {2*q}, v21\nv_xor_b32 v23, v23, v22\nv_lshlrev_b32 v23, 4, v23\nv_lshl_add_u32 v23, v20, 7, v23")
            a(f"v_add_u32 v{XRb+q}, s{T0+9}, v23")
        a("v_bfe_u32 v20, v1, 2, 2\nv_lshl_add_u32 v20, v21, 3, v20\nv_mul_u32_u24 v20, 192, v20")
        a("v_and_b32 v22, 3, v1\nv_lshl_add_u32 v20, v22, 3, v20\nv_bfe_u32 v22, v1, 4, 1")
        a(f"v_mul_u32_u24 v23, {P_UP}, v22\nv_add3_u32 v{self.V_GU0}, v20, v23, 0")
        a(f"v_lshl_add_u32 v20, v22, 5, v20\nv_add_u32 v{self.V_Q0}, {P_QKV}, v20")
        a(f"s_mov_b32 s{self.S_HIM}, 0xffff0000")
        a(f"s_mov_b32 s{T0+11}, 0x3f803f80")
        for i in range(4):
            a(f"v_mov_b32 v{self.V_ST+i}, 0")
        a(f"v_mov_b32 v231, s{T0+11}")
        for i in range(144):
            a(f"v_mov_b32 v{self.ACC+i}, 0")
        if self.mode == "mega":
            self.attn_prefill()
        a(f"s_mov_b32 s{self.S_RD}, {W0 + 2*STG}\ns_mov_b32 s{self.S_LD}, {W0 + 2*STG}")
        for lb in range(8):
            a(f"; need @x{lb}")
            if lb in (0, 4, 7):
                self.stamp(2 + (0, 4, 7).index(lb))
            if lb + 3 < 8:
                self.x_dma(lb + 3)
            if lb in (5, 6):
                l3, le = self.lab("w3"), self.lab("we")
                a(f"s_cbranch_vccnz {l3}")
                st = a.st.copy()
                for half in range(2):
                    m, d = self.w_dma_half(half)
                    a.many(m + ["s_nop 0"] + d + self.w_adv())
                a(f"s_branch {le}")
                a.raw(f"{l3}:")
                a.st = st
                for i in range(6):
                    a(f"buffer_load_dword v{self.V_CT + 3}, v{XO}, {srd(SX)}, 0 offen ; spare slot".replace(f"v{self.V_CT+3}", "v254"))
                a.st.vm[-6:] = [set() for _ in range(6)]
                a.raw(f"{le}:")
                if lb == 5:
                    a(f"s_mov_b32 s{self.S_LD}, {W0}")
                else:
                    a.many(self.w_wrap())
            dst = self.XR + 16 * lb if lb < 2 else self.V_T
            pos = ((lb + 6) & 7) * 16384
            for q in range(4):
                if pos < 65536:
                    a(f"ds_read_b128 {vr(dst + 4*q, 4)}, v{XRb+q} offset:{pos}")
                else:
                    a(f"v_add_u32 v252, 65536, v{XRb+q}\nds_read_b128 {vr(dst + 4*q, 4)}, v252 offset:{pos - 65536}")
            for d in range(16):
                a(f"v_dot2c_f32_bf16 v{self.V_ST + (d & 1)}, v{dst+d}, v231\nv_dot2c_f32_bf16 v{self.V_ST + 2 + (d & 1)}, v{dst+d}, v{dst+d}")
            if lb == 1:
                a("s_barrier")
        ST, M, RS = self.V_ST, self.V_M, self.V_RS
        a(f"v_add_f32 v{ST}, v{ST}, v{ST+1}\nv_add_f32 v{ST+2}, v{ST+2}, v{ST+3}")
        a(f"v_mov_b32 v{ST+1}, v{ST}\nv_mov_b32 v{ST+3}, v{ST+2}")
        a(f"v_permlane32_swap_b32 v{ST}, v{ST+1}\nv_permlane32_swap_b32 v{ST+2}, v{ST+3}")
        a(f"v_add_f32 v{ST}, v{ST}, v{ST+1}\nv_add_f32 v{ST+2}, v{ST+2}, v{ST+3}")
        a(f"v_mul_f32 v{M}, {f2u(1/512):#x}, v{ST}\nv_mul_f32 v{ST+2}, {f2u(1/512):#x}, v{ST+2}")
        a(f"v_fma_f32 v{ST+2}, -v{M}, v{M}, v{ST+2}\nv_max_f32 v{ST+2}, 0, v{ST+2}\nv_add_f32 v{ST+2}, {f2u(1e-5):#x}, v{ST+2}")
        a(f"v_rsq_f32 v{RS}, v{ST+2}")
        a.many(self.center(0, 0))
        a(f"ds_read_b128 {vr(self.XR, 4)}, v{XRb} offset:0")
        self.stamp(5)
        a("s_waitcnt vmcnt(6)\ns_barrier")
        self.stamp(6)
        a(f"v_add_u32 v{self.V_GU}, s{self.S_RD}, v{self.V_GU0}\nv_add_u32 v{self.V_Q}, s{self.S_RD}, v{self.V_Q0}")
        for k in range(self.AHEAD):
            a.many(self.wread(k))
        a(f"s_mov_b32 s{self.S_IT}, 0")

    def rstd_rows(self):
        a = self.a
        a(f"s_lshl_b32 s{T0+9}, s{S_W}, 7\ns_add_u32 s{T0+9}, s{T0+9}, {LDS_SCR}")
        a(f"v_and_b32 v252, 31, v1\nv_lshl_add_u32 v252, v252, 2, s{T0+9}\nds_write_b32 v252, v{self.V_RS}")
        a(f"v_lshrrev_b32 v253, 5, v1\nv_lshl_add_u32 v253, v253, 4, s{T0+9}\ns_waitcnt lgkmcnt(0)")
        for j in range(4):
            a(f"ds_read_b128 {vr(self.V_T + 4*j, 4)}, v253 offset:{32*j}")

    def p1_loop(self, nv):
        a = self.a
        body = []
        for step in range(8):
            gaps = [[] for _ in range(9)]
            cen = self.center((step + 1) % 8, (step + 1) & 1)
            if self.o.get("nocen"):
                cen = []
            p = step
            off = 0 if p < 3 else (16384 if p < 7 else 32768)
            refill = f"ds_read_b128 {vr(self.XR + 4*((p+1) % 8), 4)}, v{self.V_XR + (p+1) % 4} offset:{off}"
            pre = [[] for _ in range(9)]
            if step & 1:
                gb = 9 - self.AHEAD
                bnd = ["s_waitcnt vmcnt(0)", "s_barrier", f"s_mov_b32 s{self.S_RD}, s{self.S_LD}",
                       f"s_add_u32 s{self.S_LD}, s{self.S_LD}, {STG}",
                       f"v_add_u32 v{self.V_GU}, s{self.S_RD}, v{self.V_GU0}",
                       f"s_cmp_ge_u32 s{self.S_LD}, {W0 + 3*STG}",
                       f"s_cselect_b32 s{self.S_LD}, {W0}, s{self.S_LD}",
                       f"v_add_u32 v{self.V_Q}, s{self.S_RD}, v{self.V_Q0}"]
                if self.o.get("nobar"):
                    bnd = bnd[2:]
                pre[gb] = bnd
                if step == 5:
                    gaps[gb - 1] += [f"s_cmp_eq_u32 s{self.S_IT}, 3", "s_cselect_b64 vcc, -1, vcc"]
                for half in range(2):
                    lbl = self.lab("sk")
                    m, d = self.w_dma_half(half)
                    grp = [f"s_cbranch_vccnz {lbl}"] + m + self.w_adv_late(half, d) + [f"{lbl}:"]
                    if not self.o.get("nodma"):
                        gaps[gb + 1 + half] += grp
                if step in (1, 5):
                    pass
                free = [g for g in range(9) if g not in (gb, gb + 1, gb + 2)]
            else:
                free = list(range(9))
            n = len(free)
            for i, g in enumerate(free):
                lo, hi = len(cen) * i // n, len(cen) * (i + 1) // n
                gaps[g] += cen[lo:hi]
            gaps[free[-1]].append(refill)
            if step in (3, 7):
                gaps[8] += self.w_wrap()
            for u in range(9):
                k = step * 9 + u
                acc = vr(self.ACC + 16 * u, 16)
                wf = vr(self.WF + 4 * (k % self.NWF), 4)
                cf = vr(self.CB + 4 * (step & 1), 4)
                if k % 2 == 0:
                    body.append(f"; need {wf},{vr(self.WF + 4*((k+1) % self.NWF), 4)}")
                isv = u >= 9 - nv
                body.append(f"v_mfma_f32_32x32x16_bf16 {acc}, {cf if isv else wf}, {wf if isv else cf}, {acc}")
                body += pre[u]
                body += self.wread(k + self.AHEAD)
                body += gaps[u]
        tail = [f"v_add_u32 v{self.V_XR+q}, 0x8000, v{self.V_XR+q}" for q in range(4)]
        lbl = self.lab("p1")
        tail += [f"s_add_u32 s{self.S_IT}, s{self.S_IT}, 1", f"s_cmp_lt_u32 s{self.S_IT}, 4", f"s_cbranch_scc1 {lbl}"]
        a.loop(lbl, body, tail)
        a.st.vm = []
        a("s_waitcnt lgkmcnt(0)")

    def w_adv_late(self, half, d):
        return ["s_nop 0"] + d + self.w_adv()

    def qkv_epilogue(self, nv):
        a = self.a
        RS = self.V_RS
        t = T0 + 9
        a(f"s_lshl_b32 s{t}, s{S_R}, 2\ns_add_u32 s{t}, s{t}, s{S_W}\ns_lshl_b32 s{t}, s{t}, 15")
        a("v_lshlrev_b32 v2, 4, v1")
        if nv:
            a("v_and_b32 v3, 15, v1\nv_lshlrev_b32 v3, 4, v3\nv_lshrrev_b32 v4, 5, v1\nv_lshl_add_u32 v3, v4, 8, v3")
            a("v_bfe_u32 v4, v1, 4, 1\nv_lshl_add_u32 v3, v4, 10, v3")
        sc1 = " sc1" if self.mode == "mega" else ""
        for i in range(3):
            acc = self.ACC + 16 * (6 + i)
            a(f"s_mul_i32 s{t+1}, s{S_G}, 3\ns_add_u32 s{t+1}, s{t+1}, {i}")
            a(f"s_lshr_b32 s{t+2}, s{t+1}, 4\ns_and_b32 s{t+1}, s{t+1}, 15\ns_lshl_b32 s{t+1}, s{t+1}, 11\ns_add_u32 s{t+1}, s{t+1}, s{t}")
            isv = i >= 3 - nv
            if not isv:
                a(f"s_cmp_eq_u32 s{t+2}, 0\ns_cselect_b32 s3, {f2u(0.25*math.log2(math.e)):#x}, 1.0\nv_mul_f32 v4, s3, v{RS}")
            a(f"s_lshl_b32 s{t+2}, s{t+2}, 21\ns_add_u32 s{t+1}, s{t+1}, s{t+2}")
            for p in range(8):
                if isv:
                    a(f"v_pk_mul_f32 {vr(acc+2*p,2)}, {vr(acc+2*p,2)}, {vr(self.V_T+2*p,2)}")
                else:
                    a(f"v_pk_mul_f32 {vr(acc+2*p,2)}, {vr(acc+2*p,2)}, v[4:5] op_sel_hi:[1,0]")
            dst = self.XR + 8 * i
            for p in range(8):
                a(f"v_cvt_pk_bf16_f32 v{dst+p}, v{acc+2*p}, v{acc+2*p+1}")
            for h in range(2):
                if isv:
                    a(f"buffer_store_dwordx4 {vr(dst+4*h,4)}, v3, {srd(SWS)}, s{t+1} offen offset:{512*h}{sc1}")
                else:
                    a(f"buffer_store_dwordx4 {vr(dst+4*h,4)}, v2, {srd(SWS)}, s{t+1} offen offset:{1024*h}{sc1}")

    def gelu(self, end):
        a = self.a
        RS = self.V_RS
        t = T0 + 9
        c = math.sqrt(2 / math.pi)
        k1 = -2 * c * math.log2(math.e)
        a(f"v_mul_f32 v4, {f2u(k1):#x}, v{RS}\nv_mul_f32 v8, v{RS}, v{RS}\nv_mul_f32 v6, v4, v8\nv_mul_f32 v6, {f2u(0.044715):#x}, v6\nv_rcp_f32 v8, v8")
        a(f"s_lshl_b32 s{t}, s{S_R}, 2\ns_add_u32 s{t}, s{t}, s{S_W}\ns_mul_i32 s{t}, s{t}, {NKG}")
        a(f"s_mul_i32 s{t+1}, s{S_G}, 6\ns_add_u32 s{t}, s{t}, s{t+1}\ns_add_u32 s{t}, s{t}, 32\ns_lshl_b32 s{t}, s{t}, 10\ns_add_u32 s{t}, s{t}, {WS_F}")
        sc1 = " sc1" if self.mode == "mega" else ""
        T = self.WF
        for u in range(6):
            if u in (0, 2):
                a(f"s_cmp_ge_u32 s{S_G}, {15 if u == 0 else 14}\ns_cbranch_scc1 {end}")
            g, up = self.ACC + 16 * u, self.ACC + 16 * u + 8
            dst = self.CB + 4 * (u & 1)
            bc = "op_sel_hi:[1,0,0]"
            for p in range(4):
                a(f"v_pk_mul_f32 {vr(T+2*p,2)}, {vr(g+2*p,2)}, {vr(g+2*p,2)}")
            for p in range(4):
                a(f"v_pk_fma_f32 {vr(T+2*p,2)}, {vr(T+2*p,2)}, v[6:7], v[4:5] {bc}")
            for p in range(4):
                a(f"v_pk_mul_f32 {vr(T+2*p,2)}, {vr(T+2*p,2)}, {vr(g+2*p,2)}")
            for p in range(8):
                a(f"v_exp_f32 v{T+p}, v{T+p}")
            for p in range(4):
                a(f"v_pk_mul_f32 {vr(g+2*p,2)}, {vr(g+2*p,2)}, {vr(up+2*p,2)}")
            for p in range(4):
                a(f"v_pk_fma_f32 {vr(T+2*p,2)}, {vr(T+2*p,2)}, v[8:9], v[8:9] {bc}")
            for p in range(8):
                a(f"v_rcp_f32 v{T+p}, v{T+p}")
            a("s_nop 0")
            for p in range(4):
                a(f"v_pk_mul_f32 {vr(g+2*p,2)}, {vr(g+2*p,2)}, {vr(T+2*p,2)}")
            for p in range(4):
                a(f"v_cvt_pk_bf16_f32 v{dst+p}, v{g+2*p}, v{g+2*p+1}")
            a(f"buffer_store_dwordx4 {vr(dst,4)}, v2, {srd(SWS)}, s{t} offen offset:{1024*(u & 3)}{sc1}")
            if u == 3:
                a(f"s_add_u32 s{t}, s{t}, 4096")

    def phase1(self, done):
        a = self.a
        self.p1_start()
        self.mk_srd(SWS, 22, WS_SIZE)
        l1, l3 = self.lab("nv1"), self.lab("nv3")
        a(f"s_cmp_eq_u32 s{S_G}, 10\ns_cbranch_scc1 {l1}\ns_cmp_gt_u32 s{S_G}, 10\ns_cbranch_scc1 {l3}")
        st = a.st.copy()
        lg = self.lab("gelu")
        for nv, l in ((0, None), (1, l1), (3, l3)):
            if l:
                a.raw(f"{l}:")
            a.st = st.copy()
            if nv:
                self.rstd_rows()
            self.p1_loop(nv)
            self.stamp(7)
            self.qkv_epilogue(nv)
            self.stamp(8)
            if nv != 3:
                a(f"s_branch {lg}")
        a.raw(f"{lg}:")
        self.gelu(done)

    AQ, AK, AV, AF = 0, 8, 48, 128
    SB3 = (16, 32, 48)
    VM, VC, VO, VP, VPD, VPM = 64, 80, 96, 128, 136, 144

    def attn_prefill(self):
        a = self.a
        a("v_mov_b32 v254, 0x3f803f80")
        for i in range(80):
            a(f"v_accvgpr_write_b32 a{self.AV+i}, v254")

    def attn_setup(self):
        a = self.a
        a("v_and_b32 v2, 31, v1\nv_lshrrev_b32 v3, 5, v1\nv_lshlrev_b32 v3, 2, v3\nv_sub_u32 v2, v2, v3")
        for r in range(16):
            a(f"v_cmp_le_i32 s[{S_MASK+2*r}:{S_MASK+2*r+1}], {8*(r//4) + r % 4}, v2")
        a("v_mov_b32 v4, 0xffff\nv_mov_b32 v5, 0xffff0000")
        for p in range(8):
            a(f"v_cndmask_b32 v6, 0, v4, s[{S_MASK+4*p}:{S_MASK+4*p+1}]\nv_cndmask_b32 v7, 0, v5, s[{S_MASK+4*p+2}:{S_MASK+4*p+3}]")
            a(f"v_or_b32 v{self.VPM+p}, v6, v7")
        a("v_mov_b32 v8, 0xff800000")

    def attn_loads(self, first):
        a = self.a
        t = T0
        sc1 = " sc1" if self.mode == "mega" else ""
        a(f"s_lshl_b32 s{t+1}, s{S_NG}, 2\ns_add_u32 s{t+1}, s{t+1}, s{S_W}")
        a(f"s_lshl_b32 s{t}, s{S_TB}, 6\ns_add_u32 s{t}, s{t}, s{t+1}\ns_lshl_b32 s{t}, s{t}, 10")
        a("v_lshlrev_b32 v9, 4, v1")
        a("v_and_b32 v10, 15, v1\nv_lshlrev_b32 v10, 4, v10\nv_lshrrev_b32 v11, 5, v1\nv_lshl_add_u32 v10, v11, 8, v10")
        a(f"s_add_u32 s{t+2}, s{t}, 32768")
        a(f"buffer_load_dwordx4 {ar(self.AQ,4)}, v9, {srd(SWS)}, s{t} offen{sc1}")
        order = [i for i in (8, 0, 1, 2, 3, 4, 5, 6, 7, 9) if i >= first]
        for n, i in enumerate(order):
            a(f"s_add_u32 s{t+3}, s{t}, {(WS_K + (i-8)*32768) & 0xffffffff:#x}")
            a(f"buffer_load_dwordx4 {ar(self.AK+4*i,4)}, v9, {srd(SWS)}, s{t+3} offen{sc1}")
        a(f"buffer_load_dwordx4 {ar(self.AQ+4,4)}, v9, {srd(SWS)}, s{t+2} offen{sc1}")
        a("s_mov_b32 exec_lo, 0xffff\ns_mov_b32 exec_hi, 0xffff")
        for i in order:
            a(f"s_add_u32 s{t+3}, s{t}, {(WS_V + (i-8)*32768) & 0xffffffff:#x}")
            for u in range(2):
                a(f"buffer_load_dwordx4 {ar(self.AV+8*i+4*u,4)}, v10, {srd(SWS)}, s{t+3} offen offset:{512*u}{sc1}")
        a("s_mov_b64 exec, -1")

    def attn_tile_pair(self, first, extra=None):
        a = self.a
        t = T0
        sc1 = " sc1" if self.mode == "mega" else ""
        mf = "v_mfma_f32_32x32x16_bf16"
        VM, VC, VP, VPD, VPM = self.VM, self.VC, self.VP, self.VPD, self.VPM
        pend_final = []
        for qt in range(2):
            Q = ar(self.AQ + 4 * qt, 4)
            O = self.VO + 16 * qt
            K = lambda i: ar(self.AK + 4 * i, 4)
            V = lambda i, u: ar(self.AV + 8 * i + 4 * u, 4)
            old, diag = qt, qt + 8
            old_ok = old >= first
            mids = [i for i in range(qt + 1, qt + 8) if i >= first]
            S = self.SB3
            a(f"{mf} {vr(S[1],16)}, {K(diag)}, {Q}, 0")
            if old_ok:
                a(f"{mf} {vr(S[0],16)}, {K(old)}, {Q}, 0")
            if mids:
                a(f"{mf} {vr(S[2],16)}, {K(mids[0])}, {Q}, 0")
            a.many(pend_final)
            pend_final = []
            for r in range(16):
                src = f"v{S[0]+r}" if old_ok else "v8"
                a(f"v_cndmask_b32 v{VM+r}, {src}, v{S[1]+r}, s[{S_MASK+2*r}:{S_MASK+2*r+1}]")
            bufs = [S[2], S[0], S[1]]
            if len(mids) > 1:
                a(f"{mf} {vr(bufs[1],16)}, {K(mids[1])}, {Q}, 0")
            a(f"v_max_f32 v12, v{VM}, v{VM+1}\nv_max_f32 v13, v{VM+2}, v{VM+3}")
            for p in range(2, 8):
                a(f"v_max3_f32 v{12+(p&1)}, v{12+(p&1)}, v{VM+2*p}, v{VM+2*p+1}")
            for n, i in enumerate(mids):
                if n + 2 < len(mids):
                    a(f"{mf} {vr(bufs[(n+2)%3],16)}, {K(mids[n+2])}, {Q}, 0")
                b = bufs[n % 3]
                for p in range(8):
                    a(f"v_max3_f32 v{12+(p&1)}, v{12+(p&1)}, v{b+2*p}, v{b+2*p+1}")
            a("v_max_f32 v12, v12, v13\nv_mov_b32 v13, v12\nv_permlane32_swap_b32 v12, v13\nv_max_f32 v12, v12, v13")
            if mids:
                for r in range(16):
                    a(f"v_sub_f32 v{VC+r}, 0, v12")
            for n in range(min(2, len(mids))):
                a(f"{mf} {vr(S[n],16)}, {K(mids[n])}, {Q}, {vr(VC,16)}")
            for r in range(16):
                a(f"v_sub_f32 v{VM+r}, v{VM+r}, v12")
            for r in range(16):
                a(f"v_exp_f32 v{VM+r}, v{VM+r}")
            for p in range(8):
                a(f"v_cvt_pk_bf16_f32 v{VP+p}, v{VM+2*p}, v{VM+2*p+1}")
            pv = []
            if old_ok:
                for p in range(8):
                    a(f"v_and_b32 v{VPD+p}, v{VP+p}, v{VPM+p}")
                for p in range(8):
                    a(f"v_xor_b32 v{VP+p}, v{VP+p}, v{VPD+p}")
                pv = [f"{mf} {vr(O,16)}, {V(diag,0)}, {vr(VPD,4)}, 0", f"{mf} {vr(O,16)}, {V(diag,1)}, {vr(VPD+4,4)}, {vr(O,16)}",
                      f"{mf} {vr(O,16)}, {V(old,0)}, {vr(VP,4)}, {vr(O,16)}", f"{mf} {vr(O,16)}, {V(old,1)}, {vr(VP+4,4)}, {vr(O,16)}"]
            else:
                pv = [f"{mf} {vr(O,16)}, {V(diag,0)}, {vr(VP,4)}, 0", f"{mf} {vr(O,16)}, {V(diag,1)}, {vr(VP+4,4)}, {vr(O,16)}"]
            for n, i in enumerate(mids):
                b = S[n % 3]
                ms = list(pv)
                if n + 2 < len(mids):
                    ms.append(f"{mf} {vr(S[(n+2)%3],16)}, {K(mids[n+2])}, {Q}, {vr(VC,16)}")
                ex = [f"v_exp_f32 v{b+r}, v{b+r}" for r in range(16)]
                a.many(interleave(ms, ex, per=16 // len(ms) if len(ms) > 3 else 4))
                for p in range(8):
                    a(f"v_cvt_pk_bf16_f32 v{VP+p}, v{b+2*p}, v{b+2*p+1}")
                pv = [f"{mf} {vr(O,16)}, {V(i,0)}, {vr(VP,4)}, {vr(O,16)}", f"{mf} {vr(O,16)}, {V(i,1)}, {vr(VP+4,4)}, {vr(O,16)}"]
            a.many(pv)
            fin = [f"v_rcp_f32 v14, v{O+8}", "s_nop 0"]
            fin += [f"v_mul_f32 v{O+r}, v{O+r}, v14" for r in range(8)]
            fin += [f"v_cvt_pk_bf16_f32 v{O+8+p}, v{O+2*p}, v{O+2*p+1}" for p in range(4)]
            fin += [f"buffer_store_dwordx4 {vr(O+8,4)}, v9, {srd(SWS)}, s{t+4+qt} offen{sc1}"]
            pend_final = fin
        a.many(pend_final)

    def phase2(self, done):
        a = self.a
        t = T0
        self.attn_setup()
        a(f"s_lshl_b32 s{t+1}, s{S_NG}, 2\ns_add_u32 s{t+1}, s{t+1}, s{S_W}")
        a(f"s_mul_i32 s{t+4}, s{S_TB}, {2*NKG}\ns_add_u32 s{t+4}, s{t+4}, s{t+1}\ns_lshl_b32 s{t+4}, s{t+4}, 10\ns_add_u32 s{t+4}, s{t+4}, {WS_F}")
        a(f"s_add_u32 s{t+5}, s{t+4}, {NKG*1024}")
        labs = {f: self.lab(f"at{f}") for f in (8, 6, 4, 2)}
        for tb, f in enumerate((8, 6, 4, 2)):
            a(f"s_cmp_eq_u32 s{S_TB}, {tb}\ns_cbranch_scc1 {labs[f]}")
        st = a.st.copy()
        for f in (0, 2, 4, 6, 8):
            if f:
                a.raw(f"{labs[f]}:")
            a.st = st.copy()
            self.attn_loads(f)
            self.stamp(2)
            if self.o.get("stamp"):
                a(f"; need {ar(self.AQ,4)},{ar(self.AK+32,4)}")
            self.stamp(3)
            self.attn_tile_pair(f)
            a(f"s_branch {done}")

    P3ACC, P3WF = 16, 160
    NSLOT = 20

    def p3_setup(self):
        a = self.a
        t = T0
        self.S_N, self.S_WI, self.S_FI, self.S_U0, self.S_R3, self.S_FB, self.S_LB = t, t+1, t+2, t+3, t+4, t+5, t+6
        self.mk_srd(SWD, 16, 1376 * 1024)
        self.mk_srd(SWO, 8, 512 * 1024)
        self.mk_srd(SOUT, 18, 2048 * 1024)
        a(f"s_cmp_ge_u32 s{S_W}, 2\ns_cselect_b32 s{self.S_N}, 21, 22")
        a(f"s_mul_i32 s{self.S_U0}, s{S_W}, 22\ns_cmp_eq_u32 s{S_W}, 3\ns_cselect_b32 s{self.S_U0}, 65, s{self.S_U0}")
        a(f"s_and_b32 s{self.S_R3}, s{S_TB}, 3\ns_lshl_b32 s{self.S_R3}, s{self.S_R3}, 1\ns_add_u32 s{self.S_R3}, s{self.S_R3}, s{S_NG}\ns_and_b32 s{self.S_R3}, s{self.S_R3}, 7")
        if not self.o.get("rot", 1):
            a(f"s_mov_b32 s{self.S_R3}, 0")
        a(f"s_mul_i32 s{self.S_WI}, s{self.S_R3}, 11\ns_lshr_b32 s{self.S_WI}, s{self.S_WI}, 2\ns_mov_b32 s{self.S_FI}, s{self.S_WI}")
        a(f"s_mul_i32 s{self.S_FB}, s{S_TB}, {2*NKG*1024}\ns_add_u32 s{self.S_FB}, s{self.S_FB}, {WS_F}")
        a(f"s_mul_i32 s{self.S_LB}, s{S_W}, {self.NSLOT*2048}")
        a(f"v_lshlrev_b32 v9, 4, v1\nv_add_u32 v240, {NKG*1024}, v9")
        a("v_lshrrev_b32 v2, 3, v1\nv_bfe_u32 v3, v1, 4, 1\nv_lshlrev_b32 v3, 2, v3\nv_and_b32 v4, 7, v1\nv_xor_b32 v3, v3, v4")
        a(f"v_lshlrev_b32 v3, 4, v3\nv_lshl_add_u32 v3, v2, 10, v3\ns_lshl_b32 s{t+7}, s{S_NG}, 7\nv_add_u32 v241, s{t+7}, v3\nv_add_u32 v242, 7168, v241")
        a("v_lshrrev_b32 v2, 5, v1\nv_bfe_u32 v3, v1, 2, 2\nv_lshl_add_u32 v2, v2, 2, v3\nv_lshlrev_b32 v2, 7, v2")
        a("v_bfe_u32 v3, v1, 3, 1\nv_lshl_add_u32 v2, v3, 6, v2\nv_bfe_u32 v3, v1, 4, 1\nv_lshl_add_u32 v2, v3, 5, v2")
        a(f"v_and_b32 v3, 3, v1\nv_lshl_add_u32 v2, v3, 3, v2\nv_add_u32 v243, s{self.S_LB}, v2\nv_xor_b32 v244, 64, v243")

    def p3_wdma(self, p):
        t = T0 + 7
        slot = p % self.NSLOT
        L = []
        if p < 22:
            L += [f"s_add_u32 s{t}, s{self.S_U0}, s{self.S_WI}", f"s_lshl_b32 s{t}, s{t}, 14",
                  f"s_add_u32 m0, s{self.S_LB}, {slot*2048}",
                  f"s_add_u32 s{self.S_WI}, s{self.S_WI}, 1"]
            d = SWD
            post = [f"s_cmp_ge_u32 s{self.S_WI}, s{self.S_N}", f"s_cselect_b32 s{self.S_WI}, 0, s{self.S_WI}"]
        else:
            L += [f"s_add_u32 s{t}, s{self.S_R3}, {p-22}", f"s_and_b32 s{t}, s{t}, 7", f"s_lshl_b32 s{t+1}, s{S_W}, 3",
                  f"s_add_u32 m0, s{self.S_LB}, {slot*2048}",
                  f"s_add_u32 s{t}, s{t}, s{t+1}", f"s_lshl_b32 s{t}, s{t}, 14"]
            d = SWO
            post = []
        L += [f"buffer_load_dwordx4 v241, {srd(d)}, s{t} offen lds",
              f"buffer_load_dwordx4 v242, {srd(d)}, s{t} offen offset:1024 lds"]
        return L + post

    def p3_fload(self, p):
        t = T0 + 9
        sc1 = " sc1" if self.mode == "mega" else ""
        f = self.AF + 8 * (p % 16)
        L = []
        if p < 22:
            L += [f"s_add_u32 s{t}, s{self.S_U0}, s{self.S_FI}", f"s_add_u32 s{t}, s{t}, 32", f"s_lshl_b32 s{t}, s{t}, 10",
                  f"s_add_u32 s{t}, s{t}, s{self.S_FB}"]
            if p == 21:
                L += [f"s_cmp_eq_u32 s{self.S_N}, 21", f"s_cselect_b32 s{t}, 0x40000000, s{t}"]
            post = [f"s_add_u32 s{self.S_FI}, s{self.S_FI}, 1", f"s_cmp_ge_u32 s{self.S_FI}, s{self.S_N}",
                    f"s_cselect_b32 s{self.S_FI}, 0, s{self.S_FI}"]
        else:
            L += [f"s_add_u32 s{t}, s{self.S_R3}, {p-22}", f"s_and_b32 s{t}, s{t}, 7", f"s_lshl_b32 s{t+1}, s{S_W}, 3",
                  f"s_add_u32 s{t}, s{t}, s{t+1}", f"s_lshl_b32 s{t}, s{t}, 10", f"s_add_u32 s{t}, s{t}, s{self.S_FB}"]
            post = []
        L += [f"buffer_load_dwordx4 {ar(f,4)}, v9, {srd(SWS)}, s{t} offen{sc1}",
              f"buffer_load_dwordx4 {ar(f+4,4)}, v240, {srd(SWS)}, s{t} offen{sc1}"]
        return L + post

    def p3_wread(self, p):
        slot = p % self.NSLOT
        f = self.P3WF + 8 * (p % 3)
        return [f"ds_read_b64_tr_b16 {vr(f + 4*nt + 2*aa, 2)}, v{243+nt} offset:{slot*2048 + aa*1024}"
                for nt in range(2) for aa in range(2)]

    def p3_main(self):
        a = self.a
        mf = "v_mfma_f32_32x32x16_bf16"
        NP = 30
        a.many(self.p3_wread(0))
        a.many(self.p3_wread(1))
        for p in range(NP):
            ms = []
            for tb2 in range(2):
                for nt in range(2):
                    acc = vr(self.P3ACC + 16 * (2 * tb2 + nt), 16)
                    ms.append(f"{mf} {acc}, {vr(self.P3WF + 8*(p % 3) + 4*nt, 4)}, {ar(self.AF + 8*(p % 16) + 4*tb2, 4)}, {acc if p else 0}")
            fill = []
            if p + 2 < NP:
                fill += self.p3_wread(p + 2)
            if p >= 1 and p - 1 + self.NSLOT < NP:
                fill += self.p3_wdma(p - 1 + self.NSLOT)
            if p >= 1 and p - 1 + 16 < NP:
                fill += self.p3_fload(p - 1 + 16)
            a.many(interleave(ms, fill))

    def p3_final(self):
        a = self.a
        t = T0
        a(f"s_lshl_b32 s{t}, s{S_TB}, 16\ns_lshl_b32 s{t+1}, s{S_W}, 14\ns_add_u32 s{t}, s{t}, s{t+1}\ns_lshl_b32 s{t+1}, s{S_NG}, 7\ns_add_u32 s{t}, s{t}, s{t+1}")
        a("v_lshrrev_b32 v2, 3, v1\nv_and_b32 v3, 7, v1\nv_lshlrev_b32 v4, 4, v3\nv_lshl_add_u32 v4, v2, 10, v4\nv_add_u32 v5, 8192, v4")
        a(f"buffer_load_dwordx4 v[200:203], v4, {srd(SX)}, s{t} offen\nbuffer_load_dwordx4 v[204:207], v5, {srd(SX)}, s{t} offen")
        PITCH, REG = 272, 64 * 272
        a(f"v_and_b32 v6, 31, v1\nv_mul_u32_u24 v6, {PITCH}, v6\nv_lshrrev_b32 v7, 5, v1\nv_lshl_add_u32 v6, v7, 4, v6")
        a(f"s_mul_i32 s{t+1}, s{S_W}, {REG}\nv_add_u32 v6, s{t+1}, v6")
        a(f"s_mul_i32 s{t+1}, s{S_W}, {16*PITCH}\nv_mul_u32_u24 v7, {PITCH}, v2\nv_lshl_add_u32 v7, v3, 5, v7\nv_add_u32 v7, s{t+1}, v7")
        a("s_waitcnt lgkmcnt(0)\ns_barrier")
        for tb2 in range(2):
            for nt in range(2):
                acc = self.P3ACC + 16 * (2 * tb2 + nt)
                for j in range(4):
                    a(f"ds_write_b128 v6, {vr(acc+4*j,4)} offset:{tb2*32*PITCH + nt*128 + j*32}")
        a("s_waitcnt lgkmcnt(0)\ns_barrier")
        R = 96
        for pp in range(2):
            for w in range(4):
                for h in range(2):
                    a(f"ds_read_b128 {vr(R + 32*pp + 8*w + 4*h, 4)}, v7 offset:{w*REG + pp*8*PITCH + h*16}")
        a(f"s_mov_b32 s{t+2}, 0xffff0000")
        for pp in range(2):
            b = R + 32 * pp
            x = 200 + 4 * pp
            for d in range(4):
                a(f"v_lshlrev_b32 v{208+2*d}, 16, v{x+d}\nv_and_b32 v{209+2*d}, s{t+2}, v{x+d}")
            for w in range(4):
                for d in range(4):
                    a(f"v_pk_add_f32 {vr(208+2*d,2)}, {vr(208+2*d,2)}, {vr(b+8*w+2*d,2)}")
            for d in range(4):
                a(f"v_cvt_pk_bf16_f32 v{x+d}, v{208+2*d}, v{209+2*d}")
            a(f"buffer_store_dwordx4 {vr(x,4)}, v{4+pp}, {srd(SOUT)}, s{t} offen")

    def phase3_standalone(self):
        a = self.a
        self.p3_setup()
        for p in range(self.NSLOT):
            a.many(self.p3_wdma(p))
            if p < 16:
                a.many(self.p3_fload(p))
        self.stamp(2)
        self.p3_main()
        self.stamp(3)
        self.p3_final()

    def kernel_head(self, name):
        self.a.raw(f".globl {name}\n.p2align 8\n.type {name},@function\n{name}:")
        self.a.st = WaitState()

    def desc(self, name):
        return f""".amdhsa_kernel {name}
  .amdhsa_next_free_vgpr 512
  .amdhsa_next_free_sgpr 102
  .amdhsa_accum_offset 256
  .amdhsa_group_segment_fixed_size 0
  .amdhsa_kernarg_size 80
  .amdhsa_user_sgpr_count 2
  .amdhsa_user_sgpr_kernarg_segment_ptr 1
  .amdhsa_system_sgpr_workgroup_id_x 1
.end_amdhsa_kernel
"""

    def build_split(self):
        a = self.a
        names = ["p1_kernel", "p2_kernel", "p3_kernel"]
        order = names + ([names[2]] if self.o.get("p3x2") else [])
        if self.o.get("p1x2"):
            order = [names[0], names[0]]
        head = "".join(f"; @launch kernel={n} grid=(256,1,1) block=(256,1,1) lds=163840\n" for n in order)
        head += '.amdgcn_target "amdgcn-amd-amdhsa--gfx950"\n.text\n'
        self.kernel_head(names[0])
        self.common("Lend1")
        self.phase1("Ldone1")
        a.raw("Ldone1:")
        self.stamp(9)
        if self.o.get("stamp"):
            a("s_waitcnt vmcnt(0)")
        self.stamp_store(0)
        a.raw("Lend1:\ns_endpgm")
        self.kernel_head(names[1])
        self.common("Lend2")
        a("s_waitcnt lgkmcnt(0)")
        self.stamp(0)
        self.mk_srd(SWS, 22, WS_SIZE)
        self.attn_prefill()
        self.phase2("Ldone2")
        a.raw("Ldone2:")
        self.stamp_store(1)
        a.raw("Lend2:\ns_endpgm")
        self.kernel_head(names[2])
        self.common("Lend3")
        a("s_waitcnt lgkmcnt(0)")
        self.stamp(0)
        self.mk_srd(SWS, 22, WS_SIZE)
        self.mk_srd(SX, 4, 2048 * 1024)
        self.phase3_standalone()
        self.stamp_store(2)
        a.raw("Lend3:\ns_endpgm")
        if "dk" in self.o:
            self.diag_kernel(self.o["dk"], self.o["di"], self.o.get("dmax", 1))
            head = head.replace(".amdgcn_target", "; @launch kernel=diag_kernel grid=(1,1,1) block=(256,1,1) lds=64\n.amdgcn_target")
            names = names + ["diag_kernel"]
        n = check_hazards(a.out)
        print("hazard pads inserted:", n, file=sys.stderr)
        tail = '.section .rodata,"a"\n.p2align 6\n' + "".join(self.desc(n) + ".p2align 6\n" for n in names)
        return head + a.text() + tail


if __name__ == "__main__":
    mode = sys.argv[1] if len(sys.argv) > 1 else "split"
    out = sys.argv[2] if len(sys.argv) > 2 else f"cdna_kernels/{NAME}.s"
    opts = dict(kv.split("=") for kv in sys.argv[3:])
    opts = {k: int(v) for k, v in opts.items()}
    g = Gen(mode, opts)
    txt = g.build_split() if mode == "split" else g.build_mega()
    open(out, "w").write(txt)
```

```python
import sys, math, struct
from asmlib import Asm, Ins, check_hazards, interleave, WaitState

NAME = "parallel_sum__sliding_block__glu_gated_geglu__prompt"


def f2u(x):
    return struct.unpack("<I", struct.pack("<f", x))[0]


WS_Q, WS_K, WS_V = 0, 2 << 20, 4 << 20
WS_F = 6 << 20
NKG = 59
WS_FQ = (14 << 20)
WS_FH = (14 << 20) + (64 << 10)
WS_FO = (14 << 20) + (256 << 10)
WS_NONCE = (14 << 20) + (512 << 10)
WS_STAMP = 15 << 20
WS_SIZE = 16 << 20
UNIT = 12288


def unit(k):
    return k * UNIT if k < 5 else 65536 + (k - 5) * UNIT


WINS = (0, 65536, 65536 + 5 * UNIT)


def uwin(k):
    w = 0 if k < 5 else (1 if k < 10 else 2)
    return w, unit(k) - WINS[w]


GU_UNITS = [(0, 1), (2, 3), (4, 5), (6, 7), (8, 9), (10, 11), (12, 0), (1, 2)]
SX, SG, SU, SQ, SWS, SDBG = 24, 28, 32, 36, 40, 44
SWD, SWO, SOUT = 28, 32, 36
S_NONCE, S_J = 48, 49
S_W, S_R, S_G, S_ROT, S_TB, S_NG = 52, 53, 54, 55, 56, 57
T0 = 58
S_MASK = 70
MF16 = "v_mfma_f32_16x16x32_bf16"
MF32 = "v_mfma_f32_32x32x16_bf16"


def srd(n):
    return f"s[{n}:{n + 3}]"


def vr(b, n):
    return f"v[{b}:{b + n - 1}]" if n > 1 else f"v{b}"


def ar(b, n):
    return f"a[{b}:{b + n - 1}]" if n > 1 else f"a{b}"


def lines(s):
    return [x.strip() for x in s.split("\n") if x.strip()]


class Gen:
    def __init__(self, opts):
        self.o = opts
        self.a = Asm()
        self.uid = 0

    def lab(self, s):
        self.uid += 1
        return f"L{s}_{self.uid}"

    def stamp(self, i):
        if not self.o.get("stamp"):
            return []
        return lines(f"s_memtime s[10:11]\ns_memrealtime s[50:51]\ns_waitcnt lgkmcnt(0)\nv_writelane_b32 v255, s10, {i}\nv_writelane_b32 v255, s50, {32+i}")

    def mk_srd(self, d, p, size):
        return lines(f"s_mov_b32 s{d}, s{p}\ns_mov_b32 s{d+1}, s{p+1}\ns_mov_b32 s{d+2}, {size}\ns_mov_b32 s{d+3}, 0x20000")

    V_XO, V_XR = 2, 6
    V_WG, V_WQ = 8, 11
    V_L16 = 14
    XR, ACC = 16, 144
    V_TB = 240
    V_NM, V_RS = 246, 248
    V_T = 250
    AWF, NWF, AHEAD = 128, 6, 5
    S_XSO, S_M0W = T0, T0 + 1

    def x_dma(self, lb):
        t = T0 + 2
        L = lines(f"s_add_u32 s{t}, s{S_ROT}, {lb}\ns_and_b32 s{t}, s{t}, 7\ns_lshl_b32 s{t}, s{t}, 7\n"
                  f"s_lshl_b32 m0, s{S_W}, 14\ns_add_u32 m0, m0, {(lb % 4) * 4096}\ns_add_u32 s{t}, s{t}, s{self.S_XSO}")
        L += [f"buffer_load_dwordx4 v{self.V_XO+o}, {srd(SX)}, s{t} offen offset:{o*1024} lds ; @w x{lb}" for o in range(4)]
        return L

    def slab_dma(self, d):
        t = T0 + 3
        L = lines(f"s_add_u32 s{t}, s{S_ROT}, {d}\ns_and_b32 s{t}, s{t}, 7\ns_add_u32 m0, s{self.S_M0W}, {unit(5+d)}\ns_mul_i32 s{t}, s{t}, {64*3072}")
        L += [f"buffer_load_dwordx4 v{self.V_WQ+i}, {srd(SQ)}, s{t} offen offset:{i*1024} lds ; @w q{d}" for i in range(3)]
        return L

    def gu_dma(self, d):
        t = T0 + 3
        ug, uu = GU_UNITS[d]
        L = lines(f"s_add_u32 s{t}, s{S_ROT}, {d}\ns_and_b32 s{t}, s{t}, 7\ns_add_u32 m0, s{self.S_M0W}, {unit(ug)}\ns_mul_i32 s{t}, s{t}, {64*2752}")
        L += [f"buffer_load_dwordx4 v{self.V_WG+i}, {srd(SG)}, s{t} offen offset:{i*1024} lds ; @w g{d}" for i in range(3)]
        L += [f"s_add_u32 m0, s{self.S_M0W}, {unit(uu)}", "s_nop 0"]
        L += [f"buffer_load_dwordx4 v{self.V_WG+i}, {srd(SU)}, s{t} offen offset:{i*1024} lds ; @w g{d}" for i in range(3)]
        return L

    def start(self, end):
        a = self.a
        XO, XRb, WG, WQ = self.V_XO, self.V_XR, self.V_WG, self.V_WQ
        a(f"s_cmp_ge_u32 s2, 256\ns_cbranch_scc1 {end}")
        a("s_load_dwordx16 s[4:19], s[0:1], 0\ns_load_dwordx4 s[20:23], s[0:1], 64")
        a("v_and_b32 v1, 63, v0\nv_lshrrev_b32 v2, 6, v0")
        a(f"s_and_b32 s{T0}, s2, 7\nv_readfirstlane_b32 s{S_W}, v2\ns_lshr_b32 s{S_J}, s2, 3")
        a(f"s_and_b32 s{S_R}, s{T0}, 1\ns_lshl_b32 s{S_R}, s{S_R}, 3\ns_and_b32 s{T0+2}, s{S_J}, 7\ns_add_u32 s{S_R}, s{S_R}, s{T0+2}")
        a(f"s_lshr_b32 s{T0+2}, s{S_J}, 3\ns_lshr_b32 s{S_G}, s{T0}, 1\ns_lshl2_add_u32 s{S_G}, s{S_G}, s{T0+2}")
        a(f"s_lshl1_add_u32 s{S_ROT}, s{T0+2}, s{S_R}\ns_and_b32 s{S_ROT}, s{S_ROT}, 7")
        a(f"s_and_b32 s{T0+2}, s{S_J}, 3\ns_lshl2_add_u32 s{S_TB}, s{T0}, s{T0+2}\ns_lshr_b32 s{S_NG}, s{S_J}, 2")
        if not self.o.get("rot", 1):
            a(f"s_mov_b32 s{S_ROT}, 0")
        a("v_lshrrev_b32 v20, 3, v1\nv_lshrrev_b32 v21, 4, v1\nv_and_b32 v22, 7, v1")
        a("v_xor_b32 v23, v21, v22\nv_lshlrev_b32 v23, 4, v23\nv_lshl_add_u32 v23, v20, 10, v23\nv_xor_b32 v24, 64, v23")
        a(f"v_mov_b32 v{XO}, v23\nv_add_u32 v{XO+1}, 7168, v24\nv_add_u32 v{XO+2}, 14336, v23\nv_add_u32 v{XO+3}, 21504, v24")
        a(f"s_lshl_b32 s{self.S_XSO}, s{S_R}, 17\ns_lshl_b32 s{T0+2}, s{S_W}, 15\ns_add_u32 s{self.S_XSO}, s{self.S_XSO}, s{T0+2}")
        a(f"s_mul_i32 s{self.S_M0W}, s{S_W}, 3072")
        a(f"v_lshlrev_b32 v{self.V_L16}, 4, v1")
        a("s_waitcnt lgkmcnt(0)")
        a.many(self.stamp(0))
        a.many(self.mk_srd(SX, 4, 2048 * 1024))
        a.many(self.mk_srd(SWS, 22, WS_SIZE))
        ln = self.lab("nn")
        a(f"s_or_b32 s{T0+2}, s2, s{S_W}\ns_cmp_lg_u32 s{T0+2}, 0\ns_cbranch_scc1 {ln}")
        a.raw(f"s_mov_b32 s{T0+2}, {WS_NONCE}\nbuffer_load_dword v254, off, {srd(SWS)}, s{T0+2} sc1\n{ln}:")
        a.many(self.x_dma(0))
        a.many(self.x_dma(1))
        a.many(self.mk_srd(SQ, 6, 512 * 3072))
        a(f"s_mul_i32 s{T0+4}, s{S_G}, 192\ns_lshl_b32 s{T0+5}, s{S_W}, 4\ns_movk_i32 s{T0+6}, 2752\ns_movk_i32 s{T0+7}, 3072")
        a(f"s_cmp_eq_u32 s{S_G}, 14\ns_cselect_b32 s{T0+8}, 4, 12")
        for i in range(3):
            a(f"v_add_u32 v20, {64*i}, v1\nv_mul_u32_u24 v21, 683, v20\nv_lshrrev_b32 v21, 13, v21")
            a(f"v_mul_u32_u24 v22, 12, v21\nv_sub_u32 v22, v20, v22\nv_bfe_u32 v23, v21, 3, 1\nv_lshlrev_b32 v23, 1, v23\nv_xor_b32 v22, v22, v23")
            a(f"v_cmp_gt_u32 s[{T0+10}:{T0+11}], s{T0+8}, v22")
            a(f"v_lshl_add_u32 v22, v22, 4, s{T0+4}\nv_add_u32 v21, s{T0+5}, v21\nv_subrev_u32 v22, {1024*i}, v22")
            a(f"v_mad_u32_u24 v{WQ+i}, v21, s{T0+7}, v22\nv_mad_u32_u24 v23, v21, s{T0+6}, v22\nv_mov_b32 v24, 0x40000000")
            a(f"v_cndmask_b32 v{WG+i}, v24, v23, s[{T0+10}:{T0+11}]")
        a.many(self.slab_dma(0))
        a.many(self.x_dma(2))
        a.many(self.x_dma(3))
        a.many(self.mk_srd(SG, 12, 512 * 2752))
        a.many(self.mk_srd(SU, 14, 512 * 2752))
        a.many(self.mk_srd(SDBG, 20, 256))
        a(f"s_cmp_eq_u32 s{S_G}, 15\ns_cselect_b32 s{SG+2}, 0, s{SG+2}\ns_cselect_b32 s{SU+2}, 0, s{SU+2}")
        a("v_and_b32 v20, 15, v1\nv_lshrrev_b32 v21, 4, v1\nv_lshrrev_b32 v22, 1, v20\nv_xor_b32 v22, v22, v21")
        a(f"v_lshlrev_b32 v22, 4, v22\nv_lshl_add_u32 v22, v20, 7, v22\ns_lshl_b32 s{T0+2}, s{S_W}, 14")
        a(f"v_add_u32 v{XRb}, s{T0+2}, v22\nv_xor_b32 v{XRb+1}, 64, v{XRb}")
        a("v_bfe_u32 v20, v1, 2, 2\nv_lshl_add_u32 v20, v21, 3, v20\nv_mul_u32_u24 v20, 192, v20")
        a("v_and_b32 v22, 3, v1\nv_lshl_add_u32 v20, v22, 3, v20\nv_and_b32 v22, 1, v21\nv_lshlrev_b32 v22, 5, v22")
        a("v_add_u32 v23, v20, v22\nv_sub_u32 v24, v20, v22")
        for w in range(3):
            a(f"v_add_u32 v{self.V_TB+2*w}, {WINS[w]}, v23\nv_add_u32 v{self.V_TB+2*w+1}, {WINS[w]}, v24")
        if self.o.get("codepf", 1):
            a(f"s_getpc_b64 s[{T0+10}:{T0+11}]")
            a.raw("Lpc:")
            a(f"s_lshl2_add_u32 s{T0+2}, s{S_J}, s{S_W}\ns_and_b32 s{T0+2}, s{T0+2}, 7\ns_lshl_b32 s{T0+2}, s{T0+2}, 13")
            a(f"v_lshl_add_u32 v20, v1, 7, s{T0+2}\nv_min_u32 v20, Lcode_end-Lpc-4, v20\nglobal_load_dword v15, v20, s[{T0+10}:{T0+11}]")
        self.attn_prefill()
        ST = self.ACC
        for i in range(8):
            a(f"v_mov_b32 v{ST+i}, 0")
        a(f"v_mov_b32 v{ST+8}, 0x3f803f80")
        for lb in range(8):
            a(f"; need @x{lb}")
            if lb in (0, 4, 7):
                a.many(self.stamp(1 + (0, 4, 7).index(lb)))
            for ks in range(2):
                for tt in range(2):
                    a(f"ds_read_b128 {vr(self.XR + 16*lb + 8*ks + 4*tt, 4)}, v{XRb+ks} offset:{(lb % 4)*4096 + tt*2048}")
            if lb == 0:
                ln = self.lab("nn")
                a(f"s_or_b32 s{T0+2}, s2, s{S_W}\ns_cmp_lg_u32 s{T0+2}, 0\ns_cbranch_scc1 {ln}")
                a.raw(f"v_add_u32 v252, 1, v254\nv_mov_b32 v253, 1\ns_mov_b32 s{T0+2}, {WS_NONCE}\ns_mov_b64 exec, 1")
                a.raw(f"buffer_store_dwordx2 v[252:253], off, {srd(SDBG)}, 0 sc1\nbuffer_store_dword v252, off, {srd(SWS)}, s{T0+2} sc1\ns_mov_b64 exec, -1\n{ln}:")
            dots = []
            for ks in range(2):
                for tt in range(2):
                    for d in range(4):
                        x = self.XR + 16 * lb + 8 * ks + 4 * tt + d
                        dots += [f"v_dot2c_f32_bf16 v{ST + 4*tt + (d & 1)}, v{x}, v{ST+8}", f"v_dot2c_f32_bf16 v{ST + 4*tt + 2 + (d & 1)}, v{x}, v{x}"]
            a.many(dots[:24])
            if lb + 4 < 8:
                a.many(self.x_dma(lb + 4))
            if lb == 2 and self.o.get("touch", 1):
                a(f"s_mul_i32 s{T0+3}, s{S_ROT}, {64*2752}")
                a("v_lshrrev_b32 v250, 2, v1\nv_and_b32 v251, 1, v1\nv_lshlrev_b32 v251, 7, v251")
                a(f"v_add_u32 v250, s{T0+5}, v250\nv_mad_u32_u24 v250, v250, s{T0+6}, v251\nv_add_u32 v250, s{T0+4}, v250")
                a(f"s_mov_b32 exec_lo, 0x33333333\ns_mov_b32 exec_hi, 0x33333333\nbuffer_load_dword v15, v250, {srd(SG)}, s{T0+3} offen")
                a(f"s_not_b64 exec, exec\nbuffer_load_dword v15, v250, {srd(SU)}, s{T0+3} offen\ns_mov_b64 exec, -1")
            if lb >= 4:
                a.many(self.slab_dma(lb - 3))
            a.many(dots[24:])
        NM, RS, T = self.V_NM, self.V_RS, self.V_T
        for tt in range(2):
            a(f"v_add_f32 v{ST+4*tt}, v{ST+4*tt}, v{ST+4*tt+1}\nv_add_f32 v{ST+4*tt+2}, v{ST+4*tt+2}, v{ST+4*tt+3}")
        for sw in ("v_permlane16_swap_b32", "v_permlane32_swap_b32"):
            for k in range(4):
                a(f"v_mov_b32 v{ST+2*k+1}, v{ST+2*k}")
            for k in range(4):
                a(f"{sw} v{ST+2*k}, v{ST+2*k+1}")
            for k in range(4):
                a(f"v_add_f32 v{ST+2*k}, v{ST+2*k}, v{ST+2*k+1}")
        for tt in range(2):
            a(f"v_mul_f32 v{NM+tt}, {f2u(-1/512):#x}, v{ST+4*tt}\nv_mul_f32 v{ST+4*tt+2}, {f2u(1/512):#x}, v{ST+4*tt+2}")
        for tt in range(2):
            a(f"v_fma_f32 v{ST+4*tt+2}, -v{NM+tt}, v{NM+tt}, v{ST+4*tt+2}\nv_max_f32 v{ST+4*tt+2}, 0, v{ST+4*tt+2}")
            a(f"v_add_f32 v{ST+4*tt+2}, {f2u(1e-5):#x}, v{ST+4*tt+2}\nv_rsq_f32 v{RS+tt}, v{ST+4*tt+2}")
        a.many(self.stamp(4))
        a(f"s_movk_i32 s{T0+8}, 0x3f80\ns_mov_b32 s{T0+9}, 1.0")
        cen = []
        TT = self.ACC + 16
        N = 128
        for n in range(N + 2):
            if n < N:
                x, tt = self.XR + n, (n >> 2) & 1
                t = TT + 2 * (n % 3)
                cen += [f"v_dot2_f32_bf16 v{t}, v{x}, s{T0+8}, v{NM+tt}", f"v_dot2_f32_bf16 v{t+1}, v{x}, s{T0+9}, v{NM+tt}"]
            if n >= 2:
                t = TT + 2 * ((n - 2) % 3)
                cen += [f"v_cvt_pk_bf16_f32 v{self.XR + n - 2}, v{t}, v{t+1}"]
        rest = []
        for d in range(5, 8):
            rest.append("\n".join(self.slab_dma(d)))
        a.many(interleave(["\n".join(cen[i:i + 48]) for i in range(0, len(cen), 48)], rest, per=1))
        a.many(self.stamp(5))

    def frag_list(self, nv):
        F = []
        for ks in range(16):
            for j in range(6):
                F.append(("q", ks, j, 5 + ks // 2))
        for ks in range(16):
            for j in range(6):
                ug, uu = GU_UNITS[ks // 2]
                F.append(("g", ks, j, ug))
                F.append(("u", ks, j, uu))
        return F

    def frag_reads(self, n, f):
        kind, ks, j, u = f
        w, off = uwin(u)
        b = self.V_TB + 2 * w + (j & 1)
        r = self.AWF + 4 * (n % self.NWF)
        return [f"ds_read_b64_tr_b16 {ar(r + 2*aa, 2)}, v{b} offset:{off + (ks & 1)*6144 + aa*768 + j*32}" for aa in range(2)]

    def frag_mfmas(self, n, f, nv):
        kind, ks, j, u = f
        wf = ar(self.AWF + 4 * (n % self.NWF), 4)
        L = []
        for tt in range(2):
            xf = vr(self.XR + 8 * ks + 4 * tt, 4)
            if kind == "q":
                acc = vr(self.ACC + 4 * (2 * j + tt), 4)
            else:
                acc = vr(self.ACC + 8 * (2 * j + tt) + (4 if kind == "u" else 0), 4)
            isv = kind == "q" and j >= 6 - nv
            L.append(f"{MF16} {acc}, {xf if isv else wf}, {wf if isv else xf}, {acc if ks else 0}")
        return L

    def emit_round(self, F, lo, hi, nv, events, extra):
        a = self.a
        pend = []
        for n in range(lo, hi):
            m = self.frag_mfmas(n, F[n], nv)
            k = n + self.AHEAD
            rd = self.frag_reads(k, F[k]) if k < len(F) else []
            if n % 2 == 0:
                regs = [ar(self.AWF + 4 * (n % self.NWF), 4)]
                if n + 1 < hi:
                    regs.append(ar(self.AWF + 4 * ((n + 1) % self.NWF), 4))
                a("; need " + ",".join(regs))
            a(m[0])
            if k in events:
                a.many(events[k])
            if k in extra:
                pend += extra[k]
            if rd:
                a(rd[0])
            a(m[1])
            if rd:
                a(rd[1])
            if pend and k not in events:
                a(pend.pop(0))
        a.many(pend)

    def need_bar(self, tags, stamp=None):
        L = ["; need " + ",".join("@" + t for t in tags), "s_barrier"]
        if stamp is not None:
            L += self.stamp(stamp)
        return L

    def dma_items(self, L):
        out, cur = [], []
        for x in L:
            cur.append(x)
            if x.startswith("buffer_"):
                out.append("\n".join(cur))
                cur = []
        if cur:
            out.append("\n".join(cur))
        res = []
        for it in out:
            p = it.split("\n")
            while len(p) > 2:
                res.append("\n".join(p[:2]) if not p[1].startswith("s_add_u32 m0") or len(p) > 3 else p[0])
                p = p[2:] if not p[1].startswith("s_add_u32 m0") or len(p) > 3 else p[1:]
                if len(p) == 2 and p[0].startswith("s_add_u32 m0"):
                    res.append(p[0])
                    p = p[1:]
            res.append("\n".join(p))
        return res

    def qkv_round(self, nv, F):
        a = self.a
        ev = {24: self.need_bar(["q2", "q3"]), 48: self.need_bar(["q4", "q5"]), 72: self.need_bar(["q6", "q7"]),
              96: self.need_bar(["g0", "g1"])}
        ex = {self.AHEAD: self.dma_items(self.gu_dma(0) + self.gu_dma(1)), 24: self.dma_items(self.gu_dma(2)),
              48: self.dma_items(self.gu_dma(3)), 72: self.dma_items(self.gu_dma(4)), 96: self.dma_items(self.gu_dma(5))}
        if nv:
            a(f"v_lshrrev_b32 v250, 4, v1\nv_lshlrev_b32 v250, 4, v250")
            for i in range(4):
                a(f"v_add_u32 v251, {4*i}, v250")
                for tt in range(2):
                    a(f"ds_bpermute_b32 v{self.ACC + 48 + 4*tt + i}, v251, v{self.V_RS+tt}")
        self.emit_round(F, 0, 96, nv, ev, ex)
        a.many(self.stamp(7))
        RS = self.V_RS
        t = T0 + 4
        a(f"buffer_load_dwordx2 v[252:253], off, {srd(SDBG)}, 0 sc1")
        a(f"s_lshl2_add_u32 s{t}, s{S_R}, s{S_W}\ns_lshl_b32 s{t}, s{t}, 15\ns_mul_i32 s{t+1}, s{S_G}, 6")
        D = self.ACC + 56
        for j in range(6):
            isv = j >= 6 - nv
            A, B = self.ACC + 8 * j, self.ACC + 8 * j + 4
            d = D + 4 * (j & 1)
            a(f"s_lshr_b32 s{t+2}, s{t+1}, 5\ns_and_b32 s{t+3}, s{t+1}, 31\ns_add_u32 s{t+1}, s{t+1}, 1")
            if not isv:
                a(f"s_cmp_eq_u32 s{t+2}, 0\ns_cselect_b32 s3, {f2u(0.25*math.log2(math.e)):#x}, 1.0")
                a(f"v_mul_f32 v{D+8}, s3, v{RS}\nv_mul_f32 v{D+10}, s3, v{RS+1}")
            a(f"s_lshl_b32 s{t+2}, s{t+2}, 21\ns_lshl_b32 s{t+3}, s{t+3}, 10\ns_add_u32 s{t+2}, s{t+2}, s{t}\ns_add_u32 s{t+2}, s{t+2}, s{t+3}")
            for tt, S in enumerate((A, B)):
                for p in range(2):
                    if isv:
                        a(f"v_pk_mul_f32 {vr(S+2*p,2)}, {vr(S+2*p,2)}, {vr(self.ACC + 48 + 4*tt + 2*p, 2)}")
                    else:
                        a(f"v_pk_mul_f32 {vr(S+2*p,2)}, {vr(S+2*p,2)}, {vr(D+8+2*tt,2)} op_sel_hi:[1,0]")
            for tt, S in enumerate((A, B)):
                for p in range(2):
                    a(f"v_cvt_pk_bf16_f32 v{d+2*tt+p}, v{S+2*p}, v{S+2*p+1}")
            sw = "v_permlane32_swap_b32" if isv else "v_permlane16_swap_b32"
            a(f"{sw} v{d}, v{d+2}\n{sw} v{d+1}, v{d+3}")
            a(f"buffer_store_dwordx4 {vr(d,4)}, v{self.V_L16}, {srd(SWS)}, s{t+2} offen sc1 ; @w sq")
        a.many(self.stamp(8))

    def spin(self, vaddr, soff, vdst, desc=SWS, nonce_poll=False):
        lo, lk = self.lab("sp"), self.lab("ok")
        t = T0 + 10
        if nonce_poll:
            chk = f"v_cmp_ne_u32 s[{t}:{t+1}], 1, v{vdst+1}"
            ld = f"buffer_load_dwordx2 {vr(vdst,2)}, off, {srd(desc)}, 0 sc1"
        else:
            chk = f"v_cmp_ne_u32 s[{t}:{t+1}], s{S_NONCE}, v{vdst}"
            ld = f"buffer_load_dword v{vdst}, v{vaddr}, {srd(desc)}, {soff} offen sc1"
        return [chk, "s_nop 3", f"s_cmp_eq_u64 s[{t}:{t+1}], 0", f"s_cbranch_scc1 {lk}", "s_mov_b32 s3, 0",
                f"RAW {lo}:\ns_sleep 2\n{ld}\ns_add_u32 s3, s3, 1\ns_waitcnt vmcnt(0)\n{chk}\ns_cmp_gt_u32 s3, 100000\ns_cbranch_scc1 {lk}\ns_nop 1\n"
                f"s_cmp_lg_u64 s[{t}:{t+1}], 0\ns_cbranch_scc1 {lo}\n{lk}:"]

    def emit(self, L):
        for x in L:
            if x.startswith("RAW "):
                self.a.raw(x[4:])
            else:
                self.a(x)

    def publish(self, soff, only_wave0=False):
        L = []
        if only_wave0:
            l = self.lab("pb")
            return [f"s_cmp_lg_u32 s{S_W}, 0", f"s_cbranch_scc1 {l}",
                    f"RAW v_mov_b32 v250, s{S_NONCE}\ns_mov_b64 exec, 1\nbuffer_store_dword v250, off, {srd(SWS)}, {soff} sc1\ns_mov_b64 exec, -1\n{l}:"]
        return [f"v_mov_b32 v250, s{S_NONCE}", "s_mov_b64 exec, 1", f"buffer_store_dword v250, off, {srd(SWS)}, {soff} sc1", "s_mov_b64 exec, -1"]

    def gu_round(self, F):
        a = self.a
        t = T0 + 4
        self.emit(self.spin(None, None, 252, SDBG, True))
        a(f"v_readfirstlane_b32 s{S_NONCE}, v252")
        base = 96
        ev = {base + 48: self.need_bar(["g2", "g3", "sq"]), base + 96: self.need_bar(["g4", "g5"]), base + 144: self.need_bar(["g6", "g7"])}
        pub = [f"s_lshl4_add_u32 s{t}, s{S_R}, s{S_G}\ns_lshl_b32 s{t}, s{t}, 7", f"s_add_u32 s{t}, s{t}, {WS_FQ}"]
        p = self.publish(f"s{t}", True)
        pub.append("\n".join(p[:2]) + "\n" + p[2][4:])
        ex = {base + 48: pub + self.dma_items(self.gu_dma(6) + self.gu_dma(7))}
        if self.o.get("touch", 1):
            u = T0 + 6
            tw = self.mk_srd(SQ, 16, 1376 * 1024)
            tw += lines(f"s_lshl2_add_u32 s{u}, s{S_J}, s{S_W}\nv_lshlrev_b32 v250, 7, v1\ns_mul_i32 s{u+1}, s{u}, {86*128}\n"
                        f"buffer_load_dword v254, v250, {srd(SQ)}, s{u+1} offen\ns_add_u32 s{u+1}, s{u+1}, {22*128}\n"
                        f"buffer_load_dword v254, v250, {srd(SQ)}, s{u+1} offen")
            tw += self.mk_srd(SQ, 8, 512 * 1024)
            tw += lines(f"s_lshl_b32 s{u+1}, s{u}, 12\nv_and_b32 v250, 0xfff, v250\nbuffer_load_dword v254, v250, {srd(SQ)}, s{u+1} offen")
            ex[base + 100] = tw
        H = T0 + 6
        q = lines(f"s_lshl2_add_u32 s{H}, s{S_NG}, s{S_W}\ns_lshr_b32 s{H+1}, s{S_TB}, 1\n"
                  f"v_min_u32 v250, 6, v1\nv_mul_u32_u24 v251, 86, v250\nv_lshrrev_b32 v251, 8, v251\n"
                  f"v_mul_u32_u24 v252, 3, v251\nv_sub_u32 v250, v250, v252\n"
                  f"v_sub_u32 v250, s{H+1}, v250\nv_max_i32 v250, 0, v250\n"
                  f"v_add_u32 v251, 1, v251\nv_mul_u32_u24 v252, 86, v251\nv_lshrrev_b32 v252, 8, v252\nv_mul_u32_u24 v252, 3, v252\nv_sub_u32 v251, v251, v252\n"
                  f"v_lshl_add_u32 v251, v251, 5, s{H}\nv_mul_u32_u24 v251, 43, v251\nv_lshrrev_b32 v251, 8, v251\n"
                  f"v_lshl_add_u32 v250, v250, 4, v251\nv_lshlrev_b32 v250, 7, v250\nv_add_u32 v15, {WS_FQ}, v250\n"
                  f"buffer_load_dword v254, v15, {srd(SWS)}, 0 offen sc1")
        ex[base + 150] = q
        self.emit_round_raw(F, 96, len(F), ev, ex)
        a("s_waitcnt lgkmcnt(0)\ns_barrier")
        a.many(self.stamp(9))

    def emit_round_raw(self, F, lo, hi, ev, ex):
        a = self.a
        orig = a.__class__.__call__

        def call(me, text):
            if "s_cbranch" in text and "buffer_store" in text:
                me.raw(text)
            else:
                orig(me, text)
        a.__class__.__call__ = call
        try:
            self.emit_round(F, lo, hi, 0, ev, ex)
        finally:
            a.__class__.__call__ = orig

    def gelu(self, side):
        a = self.a
        RS = self.V_RS
        t = T0 + 9
        c = math.sqrt(2 / math.pi)
        k1 = -2 * c * math.log2(math.e)
        K = self.XR
        T = self.XR + 16
        for tt in range(2):
            a(f"v_mul_f32 v{K+2*tt}, {f2u(k1):#x}, v{RS+tt}\nv_mul_f32 v{K+8+2*tt}, v{RS+tt}, v{RS+tt}\nv_mul_f32 v{K+4+2*tt}, v{K+2*tt}, v{K+8+2*tt}")
            a(f"v_mul_f32 v{K+4+2*tt}, {f2u(0.044715):#x}, v{K+4+2*tt}\nv_rcp_f32 v{K+8+2*tt}, v{K+8+2*tt}")
        a(f"s_lshl2_add_u32 s{t}, s{S_R}, s{S_W}\ns_mul_i32 s{t}, s{t}, {2*NKG}\ns_mul_i32 s3, s{S_G}, 3\ns_add_u32 s{t}, s{t}, s3")
        a(f"s_lshl_b32 s{t}, s{t}, 10\ns_add_u32 s{t}, s{t}, {WS_F + 16*1024}\nv_add_u32 v{K+12}, {NKG*1024}, v{self.V_L16}")
        bc = "op_sel_hi:[1,0,0]"
        a.many(side)
        for p in range(3):
            if p < 2:
                a(f"s_cmp_ge_u32 s{S_G}, {15 - p}\ns_cselect_b32 s{t}, 0x40000000, s{t}")
            for tt in range(2):
                pr = []
                for jj in range(2):
                    b = self.ACC + 8 * (2 * (2 * p + jj) + tt)
                    pr += [(b, b + 4), (b + 2, b + 6)]
                dst = T + 8 + 4 * tt
                for q, (g, u) in enumerate(pr):
                    a(f"v_pk_mul_f32 {vr(T+2*q,2)}, {vr(g,2)}, {vr(g,2)}")
                for q in range(4):
                    a(f"v_pk_fma_f32 {vr(T+2*q,2)}, {vr(T+2*q,2)}, {vr(K+4+2*tt,2)}, {vr(K+2*tt,2)} {bc}")
                for q, (g, u) in enumerate(pr):
                    a(f"v_pk_mul_f32 {vr(T+2*q,2)}, {vr(T+2*q,2)}, {vr(g,2)}")
                for q in range(8):
                    a(f"v_exp_f32 v{T+q}, v{T+q}")
                for q, (g, u) in enumerate(pr):
                    a(f"v_pk_mul_f32 {vr(g,2)}, {vr(g,2)}, {vr(u,2)}")
                for q in range(4):
                    a(f"v_pk_fma_f32 {vr(T+2*q,2)}, {vr(T+2*q,2)}, {vr(K+8+2*tt,2)}, {vr(K+8+2*tt,2)} {bc}")
                for q in range(8):
                    a(f"v_rcp_f32 v{T+q}, v{T+q}")
                for q, (g, u) in enumerate(pr):
                    a(f"v_pk_mul_f32 {vr(g,2)}, {vr(g,2)}, {vr(T+2*q,2)}")
                for q, (g, u) in enumerate(pr):
                    a(f"v_cvt_pk_bf16_f32 v{dst+q}, v{g}, v{g+1}")
                a(f"buffer_store_dwordx4 {vr(dst,4)}, v{self.V_L16 if tt == 0 else K+12}, {srd(SWS)}, s{t} offen offset:{1024*p} sc1 ; @w sh")

    AQ, AK, AV, AF = 0, 8, 48, 128
    SB3 = (16, 32, 48)
    VM, VC, VO, VP, VPD, VPM = 64, 80, 96, 128, 136, 144

    def attn_prefill(self):
        a = self.a
        a("v_mov_b32 v20, 0x3f803f80")
        for i in range(80):
            a(f"v_accvgpr_write_b32 a{self.AV+i}, v20")

    def attn_setup(self):
        a = self.a
        a("v_and_b32 v2, 31, v1\nv_lshrrev_b32 v3, 5, v1\nv_lshlrev_b32 v3, 2, v3\nv_sub_u32 v2, v2, v3")
        for r in range(16):
            a(f"v_cmp_le_i32 s[{S_MASK+2*r}:{S_MASK+2*r+1}], {8*(r//4) + r % 4}, v2")
        a("v_mov_b32 v4, 0xffff\nv_mov_b32 v5, 0xffff0000")
        for p in range(8):
            a(f"v_cndmask_b32 v6, 0, v4, s[{S_MASK+4*p}:{S_MASK+4*p+1}]\nv_cndmask_b32 v7, 0, v5, s[{S_MASK+4*p+2}:{S_MASK+4*p+3}]")
            a(f"v_or_b32 v{self.VPM+p}, v6, v7")
        a("v_mov_b32 v8, 0xff800000")

    def attn_loads(self):
        t = T0
        L = lines(f"s_lshl2_add_u32 s{t+1}, s{S_NG}, s{S_W}\ns_lshl_b32 s{t}, s{S_TB}, 6\ns_add_u32 s{t}, s{t}, s{t+1}\ns_lshl_b32 s{t}, s{t}, 10")
        L += lines(f"v_and_b32 v10, 15, v1\nv_lshlrev_b32 v10, 4, v10\nv_lshrrev_b32 v11, 5, v1\nv_lshl_add_u32 v10, v11, 8, v10\ns_add_u32 s{t+2}, s{t}, 32768")
        L.append(f"buffer_load_dwordx4 {ar(self.AQ,4)}, v{self.V_L16}, {srd(SWS)}, s{t} offen sc1")
        order = (8, 0, 1, 2, 3, 4, 5, 6, 7, 9)

        def off(i, base):
            r = [f"s_add_u32 s{t+3}, s{t}, {base + (i-8)*32768:#x}"]
            if i < 8:
                r += [f"s_cmp_lt_u32 s{S_TB}, {(9 - i)//2}", f"s_cselect_b32 s{t+3}, 0x40000000, s{t+3}"]
            return r
        for i in order:
            L += off(i, WS_K)
            L.append(f"buffer_load_dwordx4 {ar(self.AK+4*i,4)}, v{self.V_L16}, {srd(SWS)}, s{t+3} offen sc1")
        L.append(f"buffer_load_dwordx4 {ar(self.AQ+4,4)}, v{self.V_L16}, {srd(SWS)}, s{t+2} offen sc1")
        L += lines("s_mov_b32 exec_lo, 0xffff\ns_mov_b32 exec_hi, 0xffff")
        for i in order:
            L += off(i, WS_V)
            for u in range(2):
                L.append(f"buffer_load_dwordx4 {ar(self.AV+8*i+4*u,4)}, v10, {srd(SWS)}, s{t+3} offen offset:{512*u} sc1")
        L.append("s_mov_b64 exec, -1")
        return L

    def attn_tile_pair(self, first, hooks):
        a = self.a
        t = T0
        VM, VC, VP, VPD, VPM = self.VM, self.VC, self.VP, self.VPD, self.VPM
        left = dict(hooks)

        def hook(key):
            self.emit(left.pop(key, []))
        pend_final = []
        for qt in range(2):
            Q = ar(self.AQ + 4 * qt, 4)
            O = self.VO + 16 * qt
            K = lambda i: ar(self.AK + 4 * i, 4)
            V = lambda i, u: ar(self.AV + 8 * i + 4 * u, 4)
            old, diag = qt, qt + 8
            old_ok = old >= first
            mids = [i for i in range(qt + 1, qt + 8) if i >= first]
            S = self.SB3
            a(f"{MF32} {vr(S[1],16)}, {K(diag)}, {Q}, 0")
            if old_ok:
                a(f"{MF32} {vr(S[0],16)}, {K(old)}, {Q}, 0")
            if mids:
                a(f"{MF32} {vr(S[2],16)}, {K(mids[0])}, {Q}, 0")
            a.many(pend_final)
            pend_final = []
            hook((qt, "p0"))
            for r in range(16):
                src = f"v{S[0]+r}" if old_ok else "v8"
                a(f"v_cndmask_b32 v{VM+r}, {src}, v{S[1]+r}, s[{S_MASK+2*r}:{S_MASK+2*r+1}]")
            bufs = [S[2], S[0], S[1]]
            if len(mids) > 1:
                a(f"{MF32} {vr(bufs[1],16)}, {K(mids[1])}, {Q}, 0")
            a(f"v_max_f32 v12, v{VM}, v{VM+1}\nv_max_f32 v13, v{VM+2}, v{VM+3}")
            for p in range(2, 8):
                a(f"v_max3_f32 v{12+(p&1)}, v{12+(p&1)}, v{VM+2*p}, v{VM+2*p+1}")
            for n, i in enumerate(mids):
                if n + 2 < len(mids):
                    a(f"{MF32} {vr(bufs[(n+2)%3],16)}, {K(mids[n+2])}, {Q}, 0")
                b = bufs[n % 3]
                for p in range(8):
                    a(f"v_max3_f32 v{12+(p&1)}, v{12+(p&1)}, v{b+2*p}, v{b+2*p+1}")
            a("v_max_f32 v12, v12, v13\nv_mov_b32 v13, v12\nv_permlane32_swap_b32 v12, v13\nv_max_f32 v12, v12, v13")
            if mids:
                for r in range(16):
                    a(f"v_sub_f32 v{VC+r}, 0, v12")
            for n in range(min(2, len(mids))):
                a(f"{MF32} {vr(S[n],16)}, {K(mids[n])}, {Q}, {vr(VC,16)}")
            hook((qt, "p1"))
            for r in range(16):
                a(f"v_sub_f32 v{VM+r}, v{VM+r}, v12")
            for r in range(16):
                a(f"v_exp_f32 v{VM+r}, v{VM+r}")
            for p in range(8):
                a(f"v_cvt_pk_bf16_f32 v{VP+p}, v{VM+2*p}, v{VM+2*p+1}")
            if old_ok:
                for p in range(8):
                    a(f"v_and_b32 v{VPD+p}, v{VP+p}, v{VPM+p}")
                for p in range(8):
                    a(f"v_xor_b32 v{VP+p}, v{VP+p}, v{VPD+p}")
                pv = [f"{MF32} {vr(O,16)}, {V(diag,0)}, {vr(VPD,4)}, 0", f"{MF32} {vr(O,16)}, {V(diag,1)}, {vr(VPD+4,4)}, {vr(O,16)}",
                      f"{MF32} {vr(O,16)}, {V(old,0)}, {vr(VP,4)}, {vr(O,16)}", f"{MF32} {vr(O,16)}, {V(old,1)}, {vr(VP+4,4)}, {vr(O,16)}"]
            else:
                pv = [f"{MF32} {vr(O,16)}, {V(diag,0)}, {vr(VP,4)}, 0", f"{MF32} {vr(O,16)}, {V(diag,1)}, {vr(VP+4,4)}, {vr(O,16)}"]
            for n, i in enumerate(mids):
                b = S[n % 3]
                ms = list(pv)
                if n + 2 < len(mids):
                    ms.append(f"{MF32} {vr(S[(n+2)%3],16)}, {K(mids[n+2])}, {Q}, {vr(VC,16)}")
                ex = [f"v_exp_f32 v{b+r}, v{b+r}" for r in range(16)]
                a.many(interleave(ms, ex, per=16 // len(ms) if len(ms) > 3 else 4))
                hook((qt, f"t{n}"))
                for p in range(8):
                    a(f"v_cvt_pk_bf16_f32 v{VP+p}, v{b+2*p}, v{b+2*p+1}")
                pv = [f"{MF32} {vr(O,16)}, {V(i,0)}, {vr(VP,4)}, {vr(O,16)}", f"{MF32} {vr(O,16)}, {V(i,1)}, {vr(VP+4,4)}, {vr(O,16)}"]
            a.many(pv)
            for key in sorted(k for k in left if k[0] == qt):
                hook(key)
            fin = [f"v_rcp_f32 v11, v{O+8}", "s_nop 0"]
            fin += [f"v_mul_f32 v{O+r}, v{O+r}, v11" for r in range(8)]
            fin += [f"v_cvt_pk_bf16_f32 v{O+8+p}, v{O+2*p}, v{O+2*p+1}" for p in range(4)]
            fin += [f"buffer_store_dwordx4 {vr(O+8,4)}, v9, {srd(SWS)}, s{self.S_OS+qt} offen sc1 ; @w so"]
            pend_final = fin
        a.many(pend_final)

    P3ACC, P3WF = 16, 160
    NSLOT, NFR, NP = 10, 8, 15
    V_FO, V_WD, V_RB = 224, 240, 228
    S_OS, S_LB, S_FB, S_WS = T0 + 4, T0 + 6, T0 + 7, T0 + 8

    def p3_setup(self):
        t = T0
        L = self.mk_srd(SWD, 16, 1376 * 1024) + self.mk_srd(SWO, 8, 512 * 1024) + self.mk_srd(SOUT, 18, 2048 * 1024)
        L += lines(f"s_mul_i32 s{self.S_LB}, s{S_W}, {self.NSLOT*4096}\ns_mul_i32 s{self.S_WS}, s{S_W}, {11*32768}")
        L += lines(f"v_lshrrev_b32 v2, 3, v1\nv_lshrrev_b32 v3, 4, v1\nv_lshlrev_b32 v3, 1, v3\nv_and_b32 v4, 7, v1\nv_xor_b32 v3, v3, v4\n"
                   f"v_lshlrev_b32 v3, 4, v3\nv_lshl_add_u32 v3, v2, 10, v3\ns_lshl_b32 s3, s{S_NG}, 7\nv_add_u32 v{self.V_WD}, s3, v3")
        L += [f"v_add_u32 v{self.V_WD+k}, {7168*k}, v{self.V_WD}" for k in range(1, 4)]
        return L

    def p3_setup2(self):
        L = lines(f"s_mul_i32 s{self.S_FB}, s{S_TB}, {4*NKG}\ns_mul_i32 s3, s{S_W}, 11\ns_add_u32 s{self.S_FB}, s{self.S_FB}, s3\n"
                  f"s_lshl_b32 s{self.S_FB}, s{self.S_FB}, 10\ns_add_u32 s{self.S_FB}, s{self.S_FB}, {WS_F + 16*1024}\nv_mov_b32 v{self.V_FO}, v{self.V_L16}")
        L += [f"v_add_u32 v{self.V_FO+k}, {NKG*1024*k}, v{self.V_L16}" for k in range(1, 4)]
        L += lines(f"v_bfe_u32 v2, v1, 2, 4\nv_lshlrev_b32 v2, 7, v2\nv_bfe_u32 v3, v1, 3, 2\nv_lshl_add_u32 v2, v3, 5, v2\n"
                   f"v_and_b32 v3, 3, v1\nv_lshl_add_u32 v2, v3, 3, v2\nv_add_u32 v{self.V_RB}, s{self.S_LB}, v2")
        L += [f"v_xor_b32 v{self.V_RB+k}, {32*k}, v{self.V_RB}" for k in range(1, 4)]
        L += lines(f"s_lshl2_add_u32 s3, s{S_NG}, s{S_W}\ns_mul_i32 s{self.S_OS}, s{S_TB}, {4*NKG*2}\ns_add_u32 s{self.S_OS}, s{self.S_OS}, s3\n"
                   f"s_lshl_b32 s{self.S_OS}, s{self.S_OS}, 9\ns_add_u32 s{self.S_OS}, s{self.S_OS}, {WS_F}\ns_add_u32 s{self.S_OS+1}, s{self.S_OS}, {2*NKG*1024}\n"
                   f"v_bfe_u32 v2, v1, 4, 1\nv_mul_u32_u24 v2, {NKG*1024}, v2\nv_lshrrev_b32 v3, 5, v1\nv_lshl_add_u32 v2, v3, 8, v2\n"
                   f"v_and_b32 v3, 15, v1\nv_lshl_add_u32 v9, v3, 4, v2")
        return L

    def p3_wdma(self, p):
        slot = p % self.NSLOT
        L = [f"s_add_u32 m0, s{self.S_LB}, {slot*4096}"]
        if p == 11:
            L.append(f"s_lshl_b32 s{self.S_WS}, s{S_W}, 17")
        else:
            L.append(f"s_add_u32 s{self.S_WS}, s{self.S_WS}, {32768 if p else 0}")
        d = SWD if p < 11 else SWO
        L += [f"buffer_load_dwordx4 v{self.V_WD+k}, {srd(d)}, s{self.S_WS} offen offset:{1024*k} lds" for k in range(4)]
        return L

    def p3_fload(self, p):
        f = self.AF + 16 * (p % self.NFR)
        L = []
        so = f"s{self.S_FB}"
        if p < 11:
            off = (p % 4) * 1024
            if p and p % 4 == 0:
                L.append(f"s_add_u32 s{self.S_FB}, s{self.S_FB}, 4096")
            if p == 10:
                L += [f"s_cmp_eq_u32 s{S_W}, 3", f"s_cselect_b32 s{self.S_FB}, 0x40000000, s{self.S_FB}"]
        else:
            off = (p - 11) * 1024
            if p == 11:
                L += lines(f"s_mul_i32 s{self.S_FB}, s{S_TB}, {NKG}\ns_add_u32 s{self.S_FB}, s{self.S_FB}, s{S_W}\n"
                           f"s_lshl_b32 s{self.S_FB}, s{self.S_FB}, 12\ns_add_u32 s{self.S_FB}, s{self.S_FB}, {WS_F}")
        L += [f"buffer_load_dwordx4 {ar(f+4*k,4)}, v{self.V_FO+k}, {srd(SWS)}, {so} offen offset:{off} sc1" for k in range(4)]
        return L

    def p3_wread(self, p):
        slot = p % self.NSLOT
        f = self.P3WF + 16 * (p % 2)
        st = 2048 if p < 11 else 1024
        L = []
        if p == 11:
            L += lines("v_lshrrev_b32 v2, 5, v1\nv_lshlrev_b32 v2, 10, v2") + [f"v_add_u32 v{self.V_RB+k}, v2, v{self.V_RB+k}" for k in range(4)]
        L += [f"ds_read_b64_tr_b16 {vr(f + 4*nt + 2*aa, 2)}, v{self.V_RB+nt} offset:{slot*4096 + aa*st}"
              for nt in range(4) for aa in range(2)]
        return L

    def p3_main(self):
        a = self.a
        t = T0
        NP = self.NP
        a.many(self.p3_wread(0))
        for p in range(NP):
            ms = []
            for nt in range(4):
                for tt in range(4):
                    acc = vr(self.P3ACC + 4 * (4 * tt + nt), 4)
                    ms.append(f"{MF16} {acc}, {vr(self.P3WF + 16*(p % 2) + 4*nt, 4)}, {ar(self.AF + 16*(p % self.NFR) + 4*tt, 4)}, {acc if p else 0}")
            fill = []
            if p + 1 < NP:
                fill += self.p3_wread(p + 1)
            if 1 <= p <= 5:
                fill += self.p3_wdma(p - 1 + self.NSLOT)
            if 1 <= p <= 3:
                fill += self.p3_fload(p - 1 + self.NFR)
            if p == 6:
                fill += lines(f"v_and_b32 v2, 7, v1\ns_lshl2_add_u32 s3, s{S_TB}, s{S_W}\ns_lshl_b32 s3, s3, 3\nv_add_u32 v2, s3, v2\n"
                              f"v_lshlrev_b32 v2, 7, v2\nv_add_u32 v15, {WS_FO}, v2\nbuffer_load_dword v254, v15, {srd(SWS)}, 0 offen sc1")
            if p == 8:
                fill += self.p3_fload(11) + self.p3_fload(12)
            if p == 9:
                fill += self.p3_fload(13) + self.p3_fload(14)
            if p == 11:
                fill += lines(f"s_lshl_b32 s{t}, s{S_TB}, 16\ns_lshl_b32 s3, s{S_W}, 14\ns_add_u32 s{t}, s{t}, s3\ns_lshl_b32 s3, s{S_NG}, 7\ns_add_u32 s{t}, s{t}, s3\n"
                              f"v_lshrrev_b32 v2, 3, v1\nv_and_b32 v3, 7, v1\nv_lshlrev_b32 v4, 4, v3\nv_lshl_add_u32 v4, v2, 10, v4\nv_add_u32 v5, 8192, v4\n"
                              f"buffer_load_dwordx4 v[200:203], v4, {srd(SX)}, s{t} offen\nbuffer_load_dwordx4 v[204:207], v5, {srd(SX)}, s{t} offen")
            if p == 2:
                a(f"s_lshl2_add_u32 s3, s{S_NG}, s{S_W}\ns_lshl_b32 s{t+1}, s{S_TB}, 5\ns_add_u32 s3, s3, s{t+1}\ns_lshl_b32 s3, s3, 7\ns_add_u32 s3, s3, {WS_FO}")
                self.emit(self.publish("s3"))
            if p == 8:
                a.many(self.stamp(16))
                self.emit(self.spin(15, 0, 254))
                a.many(self.stamp(17))
            seq = interleave(ms, fill)
            k = [i for i, x in enumerate(seq) if x == ms[8]][0]
            seq.insert(k, f"; need {vr(self.P3WF + 16*(p % 2) + 8, 8)}")
            a.many(seq)

    def p3_final(self):
        a = self.a
        t = T0
        PITCH, REG = 272, 64 * 272
        a(f"v_and_b32 v6, 15, v1\nv_mul_u32_u24 v6, {PITCH}, v6\nv_lshrrev_b32 v7, 4, v1\nv_lshl_add_u32 v6, v7, 4, v6")
        a(f"s_mul_i32 s{t+1}, s{S_W}, {REG}\nv_add_u32 v6, s{t+1}, v6")
        a(f"s_mul_i32 s{t+1}, s{S_W}, {16*PITCH}\nv_mul_u32_u24 v7, {PITCH}, v2\nv_lshl_add_u32 v7, v3, 5, v7\nv_add_u32 v7, s{t+1}, v7")
        a("s_waitcnt lgkmcnt(0)\ns_barrier")
        for nt in range(4):
            for tt in range(4):
                a(f"ds_write_b128 v6, {vr(self.P3ACC + 4*(4*tt + nt), 4)} offset:{tt*16*PITCH + nt*64}")
        a("s_waitcnt lgkmcnt(0)\ns_barrier")
        R = 96
        for pp in range(2):
            for w in range(4):
                for h in range(2):
                    a(f"ds_read_b128 {vr(R + 32*pp + 8*w + 4*h, 4)}, v7 offset:{w*REG + pp*8*PITCH + h*16}")
        a(f"s_mov_b32 s{t+2}, 0xffff0000")
        for pp in range(2):
            b = R + 32 * pp
            x = 200 + 4 * pp
            for d in range(4):
                a(f"v_lshlrev_b32 v{208+2*d}, 16, v{x+d}\nv_and_b32 v{209+2*d}, s{t+2}, v{x+d}")
            for w in range(4):
                for d in range(4):
                    a(f"v_pk_add_f32 {vr(208+2*d,2)}, {vr(208+2*d,2)}, {vr(b+8*w+2*d,2)}")
            for d in range(4):
                a(f"v_cvt_pk_bf16_f32 v{x+d}, v{208+2*d}, v{209+2*d}")
            a(f"buffer_store_dwordx4 {vr(x,4)}, v{4+pp}, {srd(SOUT)}, s{t} offen")

    def build(self):
        a = self.a
        name = NAME + "_kernel"
        head = f"; @launch grid=(256,1,1) block=(256,1,1) lds=163840\n"
        if "di" in self.o:
            head = f"; @launch kernel={name} grid=(256,1,1) block=(256,1,1) lds=163840\n; @launch kernel=diag_kernel grid=(1,1,1) block=(256,1,1) lds=64\n"
        head += '.amdgcn_target "amdgcn-amd-amdhsa--gfx950"\n.text\n'
        a.raw(f".globl {name}\n.p2align 8\n.type {name},@function\n{name}:")
        self.start("Lend")
        F = self.frag_list(0)
        a.many(self.need_bar(["q0", "q1"], 6))
        for k in range(self.AHEAD):
            a.many(self.frag_reads(k, F[k]))
        l2, l6, lg = self.lab("nv2"), self.lab("nv6"), self.lab("gu")
        a(f"s_cmp_eq_u32 s{S_G}, 10\ns_cbranch_scc1 {l2}\ns_cmp_gt_u32 s{S_G}, 10\ns_cbranch_scc1 {l6}")
        st = a.st.copy()
        for nv, l in ((2, l2), (6, l6), (0, None)):
            pass
        variants = [(0, None), (2, l2), (6, l6)]
        a.st = st.copy()
        self.qkv_round(0, F)
        a.raw(f"{lg}:")
        st_after = a.st.copy()
        self.gu_round(F)
        self.emit(self.spin(15, 0, 254))
        a.many(self.stamp(10))
        a.many(self.attn_loads())
        side = self.p3_setup()
        NW1 = self.o.get("nw1", 3)
        for p in range(NW1):
            side += self.p3_wdma(p)
        self.gelu(side)
        a.many(self.stamp(11))
        self.attn_setup()
        a.many(self.p3_setup2())
        t = T0
        hooks = {}
        hooks[(0, "p1")] = ([f"s_lshl2_add_u32 s3, s{S_R}, s{S_W}", f"s_lshl4_add_u32 s3, s3, s{S_G}", "s_lshl_b32 s3, s3, 7",
                             f"s_add_u32 s3, s3, {WS_FH}", "; need @sh"] + self.publish("s3"))
        for n, p in enumerate(range(NW1, self.NSLOT)):
            hooks.setdefault((0, f"t{n}"), []).extend(self.p3_wdma(p))
        hp = lines(f"s_mul_i32 s3, s{S_W}, 11\ns_add_u32 s{t+1}, s3, 10\ns_mul_i32 s3, s3, 86\ns_lshr_b32 s3, s3, 8\n"
                   f"s_mul_i32 s{t+1}, s{t+1}, 86\ns_lshr_b32 s{t+1}, s{t+1}, 8\ns_min_u32 s{t+1}, s{t+1}, 14\n"
                   f"v_lshrrev_b32 v2, 1, v1\nv_add_u32 v2, s3, v2\nv_min_u32 v2, s{t+1}, v2\nv_and_b32 v3, 1, v1\n"
                   f"s_lshl_b32 s3, s{S_TB}, 1\nv_add_u32 v3, s3, v3\nv_lshl_add_u32 v2, v3, 4, v2\nv_lshlrev_b32 v2, 7, v2\n"
                   f"v_add_u32 v15, {WS_FH}, v2\nbuffer_load_dword v254, v15, {srd(SWS)}, 0 offen sc1")
        hooks[(1, "p0")] = hp
        hooks[(1, "p1")] = self.stamp(12) + self.spin(15, 0, 254) + self.stamp(13) + self.p3_fload(0)
        for n in range(7):
            hooks[(1, f"t{n}")] = self.p3_fload(n + 1)
        labs = {f: self.lab(f"at{f}") for f in (8, 6, 4, 2)}
        l3 = self.lab("p3")
        for tb, f in enumerate((8, 6, 4, 2)):
            a(f"s_cmp_eq_u32 s{S_TB}, {tb}\ns_cbranch_scc1 {labs[f]}")
        st_at = a.st.copy()
        uid0 = self.uid
        self.attn_tile_pair(0, hooks)
        a.raw(f"{l3}:")
        a.many(self.stamp(14))
        self.p3_main()
        a.many(self.stamp(18))
        self.p3_final()
        if self.o.get("stamp"):
            a.many(self.stamp(31))
            a(f"s_lshl2_add_u32 s10, s2, s{S_W}\ns_lshl_b32 s10, s10, 8\ns_add_u32 s10, s10, {WS_STAMP}")
            a(f"v_lshlrev_b32 v2, 2, v1\nbuffer_store_dword v255, v2, {srd(SWS)}, s10 offen")
        a.raw("Lend:\ns_endpgm")
        for nv, l in variants[1:]:
            a.raw(f"{l}:")
            a.st = st.copy()
            self.qkv_round(nv, F)
            assert len(a.st.vm) == len(st_after.vm)
            a(f"s_branch {lg}")
        import re
        for f in (2, 4, 6, 8):
            a.raw(f"{labs[f]}:")
            a.st = st_at.copy()
            hk = {k: [re.sub(r"\bL(sp|ok|pb)_(\d+)", lambda m: f"L{m.group(1)}_{m.group(2)}_{f}", x) for x in v] for k, v in hooks.items()}
            self.attn_tile_pair(f, hk)
            a(f"s_branch {l3}")
        a.raw("Lcode_end:")
        names = [name]
        if "di" in self.o:
            self.diag_kernel(self.o["di"], self.o.get("dmax", 1))
            names.append("diag_kernel")
        n = check_hazards(a.out)
        print("hazard pads inserted:", n, file=sys.stderr)
        tail = '.section .rodata,"a"\n.p2align 6\n' + "".join(self.desc(n) + ".p2align 6\n" for n in names)
        return head + a.text() + tail

    def diag_kernel(self, i, usemax):
        a = self.a
        a.raw(".globl diag_kernel\n.p2align 8\n.type diag_kernel,@function\ndiag_kernel:")
        a.st = WaitState()
        a("s_cmp_ge_u32 s2, 1\ns_cbranch_scc1 Lendd\ns_load_dwordx4 s[20:23], s[0:1], 64\ns_waitcnt lgkmcnt(0)")
        a.many(self.mk_srd(SWS, 22, WS_SIZE))
        a(f"v_lshlrev_b32 v1, 10, v0\nv_add_u32 v1, {WS_STAMP}, v1")
        a(f"buffer_load_dword v4, v1, {srd(SWS)}, 0 offen offset:{128+4*i}")
        a("v_mov_b32 v5, 0\nv_mov_b32 v6, -1\nv_mov_b32 v7, 0\nds_write_b32 v5, v6 offset:4\nds_write_b32 v5, v7 offset:8\ns_waitcnt lgkmcnt(0)\ns_barrier")
        a("ds_min_u32 v5, v4 offset:4\nds_max_u32 v5, v4 offset:8\ns_waitcnt lgkmcnt(0)\ns_barrier")
        a(f"ds_read_b32 v8, v5 offset:{8 if usemax else 4}\ns_waitcnt lgkmcnt(0)\nv_readfirstlane_b32 s10, v8\ns_nop 4\ns_add_u32 s10, s10, 10000\ns_mov_b32 s14, 0")
        a.raw("Ldspin:")
        a("s_add_u32 s14, s14, 1\ns_cmp_gt_u32 s14, 50000\ns_cbranch_scc1 Lendd")
        a("s_memrealtime s[12:13]\ns_waitcnt lgkmcnt(0)\ns_sub_u32 s12, s12, s10\ns_cmp_lt_i32 s12, 0\ns_cbranch_scc1 Ldspin")
        a.raw("Lendd:\ns_endpgm")

    def desc(self, name):
        return f""".amdhsa_kernel {name}
  .amdhsa_next_free_vgpr 512
  .amdhsa_next_free_sgpr 102
  .amdhsa_accum_offset 256
  .amdhsa_group_segment_fixed_size 0
  .amdhsa_kernarg_size 80
  .amdhsa_user_sgpr_count 2
  .amdhsa_user_sgpr_kernarg_segment_ptr 1
  .amdhsa_system_sgpr_workgroup_id_x 1
.end_amdhsa_kernel
"""


if __name__ == "__main__":
    out = sys.argv[1] if len(sys.argv) > 1 else f"cdna_kernels/{NAME}.s"
    opts = {k: int(v) for k, v in (kv.split("=") for kv in sys.argv[2:])}
    open(out, "w").write(Gen(opts).build())
```
